```python
import torch

def _softmax(x, axis=-1):
    return torch.softmax(x, dim=axis)

def _gelu(x):
    return torch.nn.functional.gelu(x, approximate='tanh')

def _silu(x):
    return torch.nn.functional.silu(x)

def _sigmoid(x):
    return torch.sigmoid(x)

def _layernorm(x, axis=-1, eps=1e-05):
    m = x.mean(dim=axis, keepdim=True)
    v = x.var(dim=axis, keepdim=True, unbiased=False)
    return (x - m) / torch.sqrt(v + eps)

def _scatter_add(tgt, idx, src, axis=0):
    return tgt.clone().index_add_(axis, idx, src)

def _segment_sum(src, seg, n):
    out = torch.zeros((n,) + src.shape[1:], dtype=src.dtype)
    return out.index_add_(0, seg, src)

def _pad(x, pw):
    flat = tuple((v for pair in reversed(pw) for v in pair))
    return torch.nn.functional.pad(x, flat)
kernel_name = 'adaLN_cond__grouped_kv_mqa__glu_gated_reglu__prompt'

def setup_inputs():

    _w = lambda a: (lambda t: t.to(torch.bfloat16) if t.is_floating_point() else t)(torch.as_tensor(a))

    def _A_setup():
        B, S, D, H = (1, 2048, 576, 32)
        Dh = D // H
        return {'x': _w((lambda *s: torch.randn(*s, dtype=torch.bfloat16) * 0.05)(B, S, D)), 'wq': _w((lambda *s: torch.randn(*s, dtype=torch.bfloat16) * 0.05)(D, H * Dh)), 'wk': _w((lambda *s: torch.randn(*s, dtype=torch.bfloat16) * 0.05)(D, Dh)), 'wv': _w((lambda *s: torch.randn(*s, dtype=torch.bfloat16) * 0.05)(D, Dh)), 'wo': _w((lambda *s: torch.randn(*s, dtype=torch.bfloat16) * 0.05)(H * Dh, D))}
    _A_in = _A_setup()

    def _B_setup():
        B, S, D, F = (1, 2048, 576, 4608)
        return {'x': _w((lambda *s: torch.randn(*s, dtype=torch.bfloat16) * 0.05)(B, S, D)), 'W_gate': _w((lambda *s: torch.randn(*s, dtype=torch.bfloat16) * 0.8)(D, F) * (2.0 / D) ** 0.5), 'W_up': _w((lambda *s: torch.randn(*s, dtype=torch.bfloat16) * 0.8)(D, F) * (2.0 / D) ** 0.5), 'W_down': _w((lambda *s: torch.randn(*s, dtype=torch.bfloat16) * 0.8)(F, D) * (1.0 / F) ** 0.5)}
    _B_in = _B_setup()
    return {'A_x': _A_in['x'], 'A_wq': _A_in['wq'], 'A_wk': _A_in['wk'], 'A_wv': _A_in['wv'], 'A_wo': _A_in['wo'], 'B_x': _B_in['x'], 'B_W_gate': _B_in['W_gate'], 'B_W_up': _B_in['W_up'], 'B_W_down': _B_in['W_down'], 'c': _w((lambda *s: torch.randn(*s, dtype=torch.bfloat16) * 0.2)(1, 576) * 8.0), 'w_mod': _w((lambda *s: torch.randn(*s, dtype=torch.bfloat16) * 0.2)(576, 6 * 576) * 576 ** (-0.5) * 8.0)}

def reference(A_x, A_wq, A_wk, A_wv, A_wo, B_x, B_W_gate, B_W_up, B_W_down, c, w_mod):

    def _A_ref(x, wq, wk, wv, wo):
        B, S, D = x.shape
        H = 32
        Dh = D // H
        q = (lambda x, *d: x.permute(*d))((x @ wq).reshape(B, S, H, Dh), 0, 2, 1, 3)
        k = x @ wk
        v = x @ wv
        scores = torch.einsum('bhqd,bkd->bhqk', q, k) * Dh ** (-0.5)
        p = _softmax(scores, axis=-1)
        o = torch.einsum('bhqk,bkd->bhqd', p, v)
        return (lambda x, *d: x.permute(*d))(o, 0, 2, 1, 3).reshape(B, S, H * Dh) @ wo

    def _B_ref(x, W_gate, W_up, W_down):
        gate = torch.einsum('bsd,df->bsf', x, W_gate)
        up = torch.einsum('bsd,df->bsf', x, W_up)
        gate = gate * (lambda x, dt: x.to(dt))(gate > 0, gate.dtype)
        h = gate * up
        return torch.einsum('bsf,fd->bsd', h, W_down)
    x = A_x
    mod = (_silu(c) @ w_mod).reshape(c.shape[0], 6, 1, -1)
    sa, ca, ga, sb, cb, gb = (mod[:, 0].clone(), mod[:, 1].clone(), mod[:, 2].clone(), mod[:, 3].clone(), mod[:, 4].clone(), mod[:, 5].clone())
    h = _layernorm(x, axis=-1) * (1 + ca) + sa
    x = x + ga * _A_ref(h, A_wq, A_wk, A_wv, A_wo)
    h = _layernorm(x, axis=-1) * (1 + cb) + sb
    x = x + gb * _B_ref(h, B_W_gate, B_W_up, B_W_down)
    return x
```

```python
import re

TRANS = ("v_exp_", "v_log_", "v_rcp_", "v_rsq_", "v_sqrt_", "v_sin_", "v_cos_")
REG_RE = re.compile(r"^(-|abs\(|neg\()?\s*([vas])(?:(\d+)|\[(\d+):(\d+)\])\)?$")

def regs_of(tok):
    tok = tok.strip()
    if tok in ("vcc", "vcc_lo", "vcc_hi"):
        return {("vcc", 0)}
    if tok in ("exec", "exec_lo", "exec_hi"):
        return {("exec", 0)}
    if tok == "m0":
        return {("m0", 0)}
    m = REG_RE.match(tok)
    if not m:
        return set()
    k = m.group(2)
    if m.group(3) is not None:
        return {(k, int(m.group(3)))}
    return {(k, i) for i in range(int(m.group(4)), int(m.group(5)) + 1)}

def split_ops(s):
    out, depth, cur = [], 0, ""
    for ch in s:
        if ch in "[(":
            depth += 1
        if ch in "])":
            depth -= 1
        if ch == "," and depth == 0:
            out.append(cur.strip()); cur = ""
        else:
            cur += ch
    if cur.strip():
        out.append(cur.strip())
    return out

class Ins:
    __slots__ = ("text", "op", "cls", "rd", "wr", "passes", "trans", "dpp", "slots", "srcC", "srcAB", "D",
                 "wide_store", "ldsdma", "srd", "laneop", "perm", "opsel")
    def __init__(self, text):
        self.text = text
        t = text.split(";")[0].strip()
        parts = t.split(None, 1)
        op = parts[0]
        self.op = op
        rest = parts[1] if len(parts) > 1 else ""
        ops = split_ops(rest)
        mods = ""
        if ops:
            lp = ops[-1].split(None, 1)
            ops[-1] = lp[0]
            mods = lp[1] if len(lp) > 1 else ""
        self.rd, self.wr = set(), set()
        self.passes = 0; self.trans = False; self.dpp = False; self.slots = 1
        self.srcC = set(); self.srcAB = set(); self.D = set()
        self.wide_store = set(); self.ldsdma = False; self.srd = set(); self.laneop = False; self.perm = False
        self.opsel = False
        R = lambda i: regs_of(ops[i]) if i < len(ops) else set()
        if op == "s_nop":
            self.cls = "nop"; self.slots = int(ops[0], 0) + 1
        elif op.startswith("v_mfma"):
            self.cls = "mfma"
            self.passes = 8 if "32x32" in op else 4
            self.D = R(0); self.srcAB = R(1) | R(2); self.srcC = R(3)
            self.wr = set(self.D); self.rd = self.srcAB | self.srcC
        elif op.startswith("v_"):
            self.cls = "valu"
            self.trans = op.startswith(TRANS)
            self.dpp = "_dpp" in op
            if op.startswith("v_cmpx"):
                self.wr = R(0) | {("exec", 0)}; self.rd = R(1) | R(2)
            elif op.startswith("v_cmp"):
                self.wr = R(0); self.rd = R(1) | R(2)
            elif op.startswith(("v_readfirstlane", "v_readlane")):
                self.wr = R(0); self.rd = R(1) | R(2); self.laneop = True
            elif op.startswith("v_permlane"):
                self.wr = R(0) | R(1); self.rd = R(0) | R(1); self.perm = True
            elif op.startswith(("v_add_co", "v_sub_co", "v_subrev_co", "v_addc_co", "v_subb_co", "v_mad_u64")):
                self.wr = R(0) | R(1)
                for i in range(2, len(ops)): self.rd |= R(i)
            else:
                self.wr = R(0)
                for i in range(1, len(ops)): self.rd |= R(i)
                if op.startswith(("v_fmac", "v_dot2c", "v_pk_fmac", "v_writelane")) or self.dpp or "sdwa" in op:
                    self.rd |= R(0)
                if "sdwa" in op or ("op_sel" in mods and not op.startswith("v_pk_")):
                    self.opsel = True
        elif op.startswith("ds_"):
            self.cls = "ds"
            if op.startswith(("ds_read", "ds_bpermute", "ds_permute", "ds_swizzle")):
                self.wr = R(0)
                for i in range(1, len(ops)): self.rd |= R(i)
            else:
                for i in range(len(ops)): self.rd |= R(i)
        elif op.startswith(("buffer_", "global_")):
            self.cls = "vmem"
            lds = re.search(r"\blds\b", mods) is not None or "_lds_" in op
            if lds:
                self.ldsdma = True
                for i in range(len(ops)): self.rd |= R(i)
                self.rd |= {("m0", 0)}
            elif "load" in op:
                self.wr = R(0)
                for i in range(1, len(ops)): self.rd |= R(i)
            else:
                for i in range(len(ops)): self.rd |= R(i)
                if "x4" in op or "x3" in op:
                    di = 0 if op.startswith("buffer") else 1
                    self.wide_store = R(di)
                if "atomic" in op and "sc0" in mods:
                    self.wr = R(0)
            self.srd = {r for r in self.rd if r[0] == "s"}
        elif op.startswith(("s_load", "s_buffer_load", "s_memtime", "s_memrealtime")):
            self.cls = "smem"
            self.wr = R(0)
            for i in range(1, len(ops)): self.rd |= R(i)
        elif op.startswith("s_"):
            self.cls = "salu"
            if op.startswith(("s_cmp", "s_cbranch", "s_branch", "s_waitcnt", "s_barrier", "s_endpgm", "s_setprio", "s_sleep", "s_bitcmp")):
                for i in range(len(ops)): self.rd |= R(i)
            else:
                self.wr = R(0)
                for i in range(1, len(ops)): self.rd |= R(i)
                if "saveexec" in op:
                    self.wr |= {("exec", 0)}
        else:
            raise ValueError("unknown instruction: " + text)

def vg(s):
    return {r for r in s if r[0] in "va" and len(r[0]) == 1}

def need(prod, cons):
    n = 0
    pv = prod.cls == "valu"
    if pv:
        wv = vg(prod.wr)
        ws = {r for r in prod.wr if r[0] in ("s", "vcc")}
        if cons.cls == "mfma" and wv & cons.rd: n = max(n, 2)
        if cons.cls == "valu":
            if cons.dpp and wv & cons.rd: n = max(n, 2)
            if cons.perm and wv & cons.rd: n = max(n, 2)
            if cons.laneop and wv & cons.rd: n = max(n, 1)
            if prod.trans and not cons.trans and wv & cons.rd: n = max(n, 1)
            if prod.opsel and (wv & (cons.rd | cons.wr)): n = max(n, 1)
            if ws & cons.rd: n = max(n, 4 if cons.laneop else 2)
            if cons.op.startswith("v_cndmask") and ("vcc", 0) in ws: n = max(n, 2)
            if ("exec", 0) in prod.wr:
                if cons.dpp: n = max(n, 5)
                if cons.laneop or cons.perm: n = max(n, 4)
                if ("exec", 0) in cons.rd: n = max(n, 2)
        if cons.cls == "mfma" and ("exec", 0) in prod.wr: n = max(n, 4)
        if cons.cls == "vmem" and ws & cons.srd: n = max(n, 5)
        if cons.cls in ("salu", "smem") and ws & cons.rd: n = max(n, 1)
    if prod.cls == "mfma":
        p8 = prod.passes == 8
        if cons.cls == "mfma":
            if prod.D & cons.srcAB: n = max(n, 12 if p8 else 8)
            if prod.D & cons.srcC:
                if not (prod.D == cons.srcC and prod.passes == cons.passes): n = max(n, 10 if p8 else 6)
            elif prod.D & cons.D:
                n = max(n, 12 if p8 else 8)
        elif cons.cls in ("valu", "vmem", "ds"):
            if prod.D & (cons.rd | cons.wr): n = max(n, 12 if p8 else 8)
            if cons.cls == "valu" and prod.srcC & cons.wr: n = max(n, 7 if p8 else 3)
            if cons.cls in ("vmem", "ds") and prod.srcC & cons.wr: n = max(n, 7 if p8 else 3)
    if prod.cls == "vmem" and prod.wide_store:
        if cons.cls == "valu" and prod.wide_store & cons.wr: n = max(n, 2)
        elif cons.cls in ("mfma", "vmem", "ds") and prod.wide_store & cons.wr: n = max(n, 1)
    if prod.cls == "salu" and ("m0", 0) in prod.wr and cons.ldsdma: n = max(n, 1)
    return n

WINDOW = 14

class Asm:
    def __init__(self):
        self.items = []
    def __call__(self, text):
        for line in text.strip("\n").split("\n"):
            s = line.strip()
            if not s or s.startswith(";"):
                continue
            if s.endswith(":") and " " not in s:
                self.items.append(("label", s[:-1]))
            elif s.startswith("."):
                self.items.append(("raw", s))
            else:
                self.items.append(("ins", Ins(s)))
    def label(self, n):
        self.items.append(("label", n))
    def raw(self, t):
        self.items.append(("raw", t))

    @staticmethod
    def _required(hist, ins):
        dist, req = 0, 0
        for p in reversed(hist):
            if dist >= WINDOW: break
            n = need(p, ins)
            if n > dist: req = max(req, n - dist)
            dist += p.slots
        return req

    def finish(self):
        out = []
        hist = []
        for kind, x in self.items:
            if kind == "ins":
                r = self._required(hist, x)
                while r > 0:
                    k = min(r, 16)
                    nop = Ins(f"s_nop {k-1}")
                    out.append(("ins", nop)); hist.append(nop); r -= k
                out.append(("ins", x)); hist.append(x)
                if x.op in ("s_branch", "s_endpgm"):
                    hist = []
                hist = hist[-WINDOW:]
            else:
                out.append((kind, x))
        labels = {x: i for i, (k, x) in enumerate(out) if k == "label"}
        for i, (k, x) in enumerate(out):
            if k == "ins" and x.op.startswith(("s_cbranch", "s_branch")):
                tgt = x.text.split(";")[0].split()[-1]
                if tgt not in labels: raise ValueError("no label " + tgt)
                h = [y for kk, y in out[max(0, i - 40):i + 1] if kk == "ins"][-WINDOW:]
                for j in range(len(h) - 2, -1, -1):
                    if h[j].op in ("s_branch", "s_endpgm"):
                        h = h[j + 1:]; break
                j = labels[tgt]; cnt = 0
                hh = list(h)
                while j < len(out) and cnt < WINDOW:
                    kk, y = out[j]
                    if kk == "ins":
                        r = self._required_cross(h, hh[len(h):], y)
                        if r > 0:
                            raise ValueError(f"hazard across branch {x.text} -> {y.text}: need {r} more")
                        hh.append(y); cnt += y.slots
                        if y.op in ("s_branch", "s_endpgm"): break
                    j += 1
        lines = []
        for k, x in out:
            if k == "ins": lines.append("    " + x.text)
            elif k == "label": lines.append(x + ":")
            else: lines.append(x)
        return "\n".join(lines) + "\n"

    @staticmethod
    def _required_cross(h, between, ins):
        dist = sum(p.slots for p in between)
        req = 0
        for p in reversed(h):
            if dist >= WINDOW: break
            n = need(p, ins)
            if n > dist: req = max(req, n - dist)
            dist += p.slots
        return req

class Alloc:
    def __init__(self, kind, start=0, limit=256):
        self.kind = kind; self.next = start; self.limit = limit; self.hi = start
    def get(self, n=1, align=1):
        if n > 1 and align == 1: align = 2 if self.kind != "s" else (4 if n >= 4 else 2)
        b = (self.next + align - 1) // align * align
        self.next = b + n
        self.hi = max(self.hi, self.next)
        assert self.next <= self.limit, f"out of {self.kind} regs"
        return b
    def mark(self): return self.next
    def release(self, m): self.next = m

def V(b, n=1): return f"v{b}" if n == 1 else f"v[{b}:{b+n-1}]"
def A_(b, n=1): return f"a{b}" if n == 1 else f"a[{b}:{b+n-1}]"
def S(b, n=1): return f"s{b}" if n == 1 else f"s[{b}:{b+n-1}]"

def kernel_header(name):
    return f""".globl {name}
.p2align 8
.type {name},@function
{name}:
"""

def kernel_desc(name, nvgpr, nsgpr, nagpr=0):
    import os
    if os.environ.get('DIAG', ''): nsgpr = 102
    acc = (nvgpr + 3) // 4 * 4
    acc = max(acc, 4)
    nfv = acc + nagpr if nagpr else nvgpr
    return f""".p2align 6
.amdhsa_kernel {name}
  .amdhsa_next_free_vgpr {nfv}
  .amdhsa_next_free_sgpr {nsgpr}
  .amdhsa_accum_offset {acc}
  .amdhsa_group_segment_fixed_size 0
  .amdhsa_kernarg_size 112
  .amdhsa_user_sgpr_count 2
  .amdhsa_user_sgpr_kernarg_segment_ptr 1
  .amdhsa_system_sgpr_workgroup_id_x 1
.end_amdhsa_kernel
"""
```

```python
from asmlib import *

S_, D_, H_, DH, F_ = 2048, 576, 32, 18, 4608
KA = dict(x=0, wq=8, wk=16, wv=24, wo=32, bx=40, wg=48, wu=56, wd=64, c=72, wmod=80, out=88, dbg=96, ws=104)
SZ = dict(x=2048*576*2, wq=576*576*2, wk=576*18*2, wv=576*18*2, wo=576*576*2, wg=576*4608*2, wu=576*4608*2,
          wd=4608*576*2, c=576*2, wmod=576*3456*2, out=2048*576*2, dbg=256, ws=0x10000000)
WS_MODT = 0x0
WS_MODB = 0x8000
WS_XH   = 0x100000
WS_WQKV = 0x400000
WS_QF   = 0x500000
WS_KV   = 0x800000
WS_OF   = 0x900000
WS_WOP  = 0xC00000
WS_X1   = 0xD00000
WS_H2F  = 0x1000000
WS_W1P  = 0x1400000
WS_W2P  = 0x2000000
WS_HF   = 0x2800000
OOB = 0x40000000

def load_ptrs(A, names, sbase):
    r = {}
    for i, n in enumerate(names):
        A(f"s_load_dwordx2 s[{sbase+2*i}:{sbase+2*i+1}], s[0:1], {KA[n]}")
        r[n] = sbase + 2 * i
    return r

def make_srd(A, srd, ptr, nbytes, off=0):
    if off:
        A(f"s_add_u32 s{srd}, s{ptr}, {off}")
        A(f"s_addc_u32 s{srd+1}, s{ptr+1}, 0")
    else:
        A(f"s_mov_b32 s{srd}, s{ptr}")
        A(f"s_mov_b32 s{srd+1}, s{ptr+1}")
    A(f"s_mov_b32 s{srd+2}, {nbytes}")
    A(f"s_mov_b32 s{srd+3}, 0x00020000")

import struct
def f32bits(x):
    return "0x%08x" % struct.unpack("<I", struct.pack("<f", x))[0]

def magic_div(d, nmax):
    for sh in range(1, 32):
        mul = (1 << sh) // d + 1
        if mul * nmax >= (1 << 32): break
        if all((n * mul) >> sh == n // d for n in range(nmax + 1)):
            return mul, sh
    raise ValueError("no magic")

def s_divmod(A, sq, sr, sn, d, nmax):
    mul, sh = magic_div(d, nmax)
    A(f"s_mul_i32 s{sq}, s{sn}, {mul}")
    A(f"s_lshr_b32 s{sq}, s{sq}, {sh}")
    if sr is not None:
        A(f"s_mul_i32 s{sr}, s{sq}, {d}")
        A(f"s_sub_u32 s{sr}, s{sn}, s{sr}")

class VM:
    def __init__(self, A): self.A = A; self.ops = []
    def issue(self, text, tag=None):
        self.A(text); self.ops.append(tag)
    def count_after(self, tag):
        idx = max(i for i, t in enumerate(self.ops) if t == tag)
        return len(self.ops) - 1 - idx
    def wait(self, tag, extra=""):
        n = self.count_after(tag)
        assert n <= 63, n
        self.A(f"s_waitcnt vmcnt({n}){extra}")
```

```python
from common import *

def gen_ln_rows(A, v, srd_in, srd_out, s_row0, out_base, modulate=None, vtid=0):
    m0 = v.mark()
    vr = v.get(); vsub = v.get(); voff = v.get(); vo = v.get(); t0 = v.get(); t1 = v.get()
    raw = v.get(36, 4)
    x = v.get(72, 2)
    A(f"v_lshrrev_b32 v{vr}, 3, v{vtid}")
    A(f"v_and_b32 v{vsub}, 7, v{vtid}")
    A(f"v_add_u32 v{vr}, {S(s_row0)}, v{vr}")
    A(f"v_mul_u32_u24 v{voff}, 1152, v{vr}")
    A(f"v_lshl_add_u32 v{voff}, v{vsub}, 4, v{voff}")
    for i in range(9):
        A(f"buffer_load_dwordx4 {V(raw+4*i,4)}, v{voff}, {S(srd_in,4)}, 0 offen offset:{128*i}")
    if modulate:
        srd_ws, off_a, off_b = modulate
        ma = v.get(36, 4); mb = v.get(36, 4); vm = v.get()
        A(f"v_lshlrev_b32 v{vm}, 4, v{vsub}")
        A(f"v_add_u32 v{t0}, {off_a}, v{vm}")
        A(f"v_add_u32 v{t1}, {off_b}, v{vm}")
        for i in range(9):
            A(f"buffer_load_dwordx4 {V(ma+4*i,4)}, v{t0}, {S(srd_ws,4)}, 0 offen offset:{128*i}")
            A(f"buffer_load_dwordx4 {V(mb+4*i,4)}, v{t1}, {S(srd_ws,4)}, 0 offen offset:{128*i}")
    A(f"v_lshrrev_b32 v{t0}, 5, v{vr}")
    A(f"v_mul_u32_u24 v{vo}, {36*1024}, v{t0}")
    A(f"v_and_b32 v{t0}, 31, v{vr}")
    A(f"v_lshl_add_u32 v{vo}, v{t0}, 4, v{vo}")
    A(f"v_lshl_add_u32 v{vo}, v{vsub}, 9, v{vo}")
    A(f"v_add_u32 v{vo}, {out_base}, v{vo}")
    sm = v.get(); sq = v.get()
    for i in range(9):
        A(f"s_waitcnt vmcnt({(8-i) + (18 if modulate else 0)})")
        for q in range(4):
            A(f"v_lshlrev_b32 v{x+8*i+2*q}, 16, v{raw+4*i+q}")
            A(f"v_and_b32 v{x+8*i+2*q+1}, 0xffff0000, v{raw+4*i+q}")
        for q in range(8):
            if i == 0 and q == 0:
                A(f"v_mov_b32 v{sm}, v{x}")
            else:
                A(f"v_add_f32 v{sm}, v{sm}, v{x+8*i+q}")
    def red8(r):
        A(f"v_add_f32_dpp v{r}, v{r}, v{r} quad_perm:[1,0,3,2] row_mask:0xf bank_mask:0xf")
        A(f"v_add_f32_dpp v{r}, v{r}, v{r} quad_perm:[2,3,0,1] row_mask:0xf bank_mask:0xf")
        A(f"v_add_f32_dpp v{r}, v{r}, v{r} row_half_mirror row_mask:0xf bank_mask:0xf")
    red8(sm)
    A(f"v_mul_f32 v{sm}, {f32bits(1.0/576)}, v{sm}")
    for e in range(72):
        A(f"v_sub_f32 v{t0 if e%2==0 else t1}, v{x+e}, v{sm}")
        tt = t0 if e % 2 == 0 else t1
        if e == 0:
            A(f"v_mul_f32 v{sq}, v{tt}, v{tt}")
        else:
            A(f"v_fmac_f32 v{sq}, v{tt}, v{tt}")
    red8(sq)
    A(f"v_mul_f32 v{sq}, {f32bits(1.0/576)}, v{sq}")
    A(f"v_cvt_pk_bf16_f32 v{t0}, v{sm}, v{sq}")
    A(f"v_lshlrev_b32 v{sm}, 16, v{t0}")
    A(f"v_and_b32 v{sq}, 0xffff0000, v{t0}")
    A(f"v_add_f32 v{sq}, {f32bits(1e-5)}, v{sq}")
    A(f"v_cvt_pk_bf16_f32 v{t0}, v{sq}, v{sq}")
    A(f"v_lshlrev_b32 v{sq}, 16, v{t0}")
    A(f"v_sqrt_f32 v{sq}, v{sq}")
    A(f"v_cvt_pk_bf16_f32 v{t0}, v{sq}, v{sq}")
    A(f"v_lshlrev_b32 v{sq}, 16, v{t0}")
    A(f"v_rcp_f32 v{sq}, v{sq}")
    if modulate:
        A("s_waitcnt vmcnt(0)")
    u0, u1, u2, u3 = v.get(), v.get(), v.get(), v.get()
    for i in range(9):
        for q in range(4):
            a, b = x + 8 * i + 2 * q, x + 8 * i + 2 * q + 1
            A(f"v_sub_f32 v{a}, v{a}, v{sm}")
            A(f"v_sub_f32 v{b}, v{b}, v{sm}")
            A(f"v_cvt_pk_bf16_f32 v{t0}, v{a}, v{b}")
            A(f"v_lshlrev_b32 v{a}, 16, v{t0}")
            A(f"v_and_b32 v{b}, 0xffff0000, v{t0}")
            A(f"v_mul_f32 v{a}, v{a}, v{sq}")
            A(f"v_mul_f32 v{b}, v{b}, v{sq}")
            A(f"v_cvt_pk_bf16_f32 v{raw+4*i+q}, v{a}, v{b}")
            if modulate:
                A(f"v_lshlrev_b32 v{a}, 16, v{raw+4*i+q}")
                A(f"v_and_b32 v{b}, 0xffff0000, v{raw+4*i+q}")
                A(f"v_lshlrev_b32 v{u0}, 16, v{ma+4*i+q}")
                A(f"v_and_b32 v{u1}, 0xffff0000, v{ma+4*i+q}")
                A(f"v_mul_f32 v{a}, v{a}, v{u0}")
                A(f"v_mul_f32 v{b}, v{b}, v{u1}")
                A(f"v_cvt_pk_bf16_f32 v{t0}, v{a}, v{b}")
                A(f"v_lshlrev_b32 v{a}, 16, v{t0}")
                A(f"v_and_b32 v{b}, 0xffff0000, v{t0}")
                A(f"v_lshlrev_b32 v{u2}, 16, v{mb+4*i+q}")
                A(f"v_and_b32 v{u3}, 0xffff0000, v{mb+4*i+q}")
                A(f"v_add_f32 v{a}, v{a}, v{u2}")
                A(f"v_add_f32 v{b}, v{b}, v{u3}")
                A(f"v_cvt_pk_bf16_f32 v{raw+4*i+q}, v{a}, v{b}")
        if i == 0:
            A(f"buffer_store_dwordx4 {V(raw+4*i,4)}, v{vo}, {S(srd_out,4)}, 0 offen")
        else:
            A(f"v_add_u32 v{vo}, 4096, v{vo}")
            A(f"buffer_store_dwordx4 {V(raw+4*i,4)}, v{vo}, {S(srd_out,4)}, 0 offen")
    v.release(m0)

NWG1 = 209
def gen_k1():
    A = Asm()
    v = Alloc("v", 1, 256)
    name = "k1_prep_kernel"
    A(f"s_cmp_ge_u32 s2, {NWG1}")
    A("s_cbranch_scc1 K1_END")
    p = load_ptrs(A, ["x", "wq", "wk", "wv", "c", "wmod", "ws"], 4)
    SX, SWQ, SWK, SWV, SC, SWM, SWS = 20, 24, 28, 32, 36, 40, 44
    lane = v.get(); wv = v.get()
    A(f"v_and_b32 v{lane}, 63, v0")
    A(f"v_lshrrev_b32 v{wv}, 6, v0")
    A(f"v_readfirstlane_b32 s48, v{wv}")
    A("s_waitcnt lgkmcnt(0)")
    make_srd(A, SX, p["x"], SZ["x"]); make_srd(A, SWQ, p["wq"], SZ["wq"]); make_srd(A, SWK, p["wk"], SZ["wk"])
    make_srd(A, SWV, p["wv"], SZ["wv"]); make_srd(A, SC, p["c"], SZ["c"]); make_srd(A, SWM, p["wmod"], SZ["wmod"])
    make_srd(A, SWS, p["ws"], SZ["ws"])
    A("s_cmp_ge_u32 s2, 176")
    A("s_cbranch_scc1 K1_PACK")
    A("s_cmp_ge_u32 s2, 112")
    A("s_cbranch_scc1 K1_LN")
    m0 = v.mark()
    A("s_and_b32 s49, s2, 7")
    A("s_lshr_b32 s50, s2, 3")
    A("s_and_b32 s51, s50, 1")
    A("s_lshr_b32 s50, s50, 1")
    A("s_lshl_b32 s50, s50, 3")
    A("s_add_u32 s50, s50, s49")
    A("s_cmp_ge_u32 s50, 54")
    A("s_cbranch_scc1 K1_END")
    A("s_lshl_b32 s50, s50, 1")
    A("s_add_u32 s50, s50, s51")
    cg = v.get(); rg = v.get(); voff = v.get(); vco = v.get(); t0 = v.get(); t1 = v.get()
    w = v.get(36, 4); cv = v.get(9); acc = v.get(8, 4)
    A(f"v_and_b32 v{cg}, 3, v0")
    A(f"v_lshrrev_b32 v{rg}, 2, v0")
    A(f"v_mul_u32_u24 v{voff}, 6912, v{rg}")
    A(f"v_lshl_add_u32 v{voff}, v{cg}, 4, v{voff}")
    A("s_lshl_b32 s52, s50, 6")
    A(f"v_lshlrev_b32 v{vco}, 1, v{rg}")
    for i in range(9):
        A(f"buffer_load_ushort v{cv+i}, v{vco}, {S(SC,4)}, 0 offen offset:{128*i}")
    for i in range(9):
        A(f"buffer_load_dwordx4 {V(w+4*i,4)}, v{voff}, {S(SWM,4)}, s52 offen")
        if i < 8: A(f"s_add_u32 s52, s52, {64*6912}")
    A("s_waitcnt vmcnt(9)")
    for i in range(9):
        A(f"v_lshlrev_b32 v{cv+i}, 16, v{cv+i}")
        A(f"v_mul_f32 v{t0}, {f32bits(-1.4426950408889634)}, v{cv+i}")
        A(f"v_exp_f32 v{t0}, v{t0}")
        A(f"v_add_f32 v{t0}, 1.0, v{t0}")
        A(f"v_rcp_f32 v{t0}, v{t0}")
        A(f"v_mul_f32 v{t0}, v{t0}, v{cv+i}")
        A(f"v_cvt_pk_bf16_f32 v{t0}, v{t0}, v{t0}")
        A(f"v_lshlrev_b32 v{cv+i}, 16, v{t0}")
    for e in range(8):
        A(f"v_mov_b32 v{acc+e}, 0")
    for i in range(9):
        A(f"s_waitcnt vmcnt({8-i})")
        for q in range(4):
            A(f"v_lshlrev_b32 v{t0}, 16, v{w+4*i+q}")
            A(f"v_and_b32 v{t1}, 0xffff0000, v{w+4*i+q}")
            A(f"v_fmac_f32 v{acc+2*q}, v{t0}, v{cv+i}")
            A(f"v_fmac_f32 v{acc+2*q+1}, v{t1}, v{cv+i}")
    for sh in (4, 8):
        for e in range(8):
            A(f"v_add_f32_dpp v{acc+e}, v{acc+e}, v{acc+e} row_ror:{sh} row_mask:0xf bank_mask:0xf")
    A(f"v_lshrrev_b32 v{t0}, 4, v0")
    A(f"v_lshlrev_b32 v{t0}, 7, v{t0}")
    A(f"v_lshl_add_u32 v{t0}, v{cg}, 5, v{t0}")
    A(f"ds_write_b128 v{t0}, {V(acc,4)}")
    A(f"ds_write_b128 v{t0}, {V(acc+4,4)} offset:16")
    A("s_waitcnt lgkmcnt(0)")
    A("s_barrier")
    A("s_cmp_lg_u32 s48, 0")
    A("s_cbranch_scc1 K1_END")
    A(f"v_and_b32 v{t1}, 31, v{lane}")
    A(f"v_lshlrev_b32 v{t0}, 2, v{t1}")
    for pz in range(16):
        A(f"ds_read_b32 v{w+pz}, v{t0} offset:{128*pz}")
    A("s_waitcnt lgkmcnt(0)")
    for pz in range(1, 16):
        A(f"v_add_f32 v{w}, v{w}, v{w+pz}")
    A(f"v_cvt_pk_bf16_f32 v{w}, v{w}, v{w}")
    A(f"v_lshlrev_b32 v{w}, 16, v{w}")
    A("s_mul_i32 s53, s50, 57")
    A("s_lshr_b32 s53, s53, 10")
    A("s_mov_b32 s54, 0")
    A("s_cmp_eq_u32 s53, 1")
    A("s_cselect_b32 s54, 1.0, s54")
    A("s_cmp_eq_u32 s53, 4")
    A("s_cselect_b32 s54, 1.0, s54")
    A(f"v_add_f32 v{w}, s54, v{w}")
    A(f"v_cvt_pk_bf16_f32 v{w+1}, v{w}, v{w}")
    A(f"v_lshlrev_b32 v{w}, 16, v{w+1}")
    A("s_lshl_b32 s55, s50, 7")
    A("s_lshl_b32 s56, s50, 6")
    A(f"s_add_u32 s56, s56, {WS_MODB}")
    A(f"v_lshlrev_b32 v{t1}, 1, v{t1}")
    A(f"buffer_store_dword v{w}, v{t0}, {S(SWS,4)}, s55 offen")
    A(f"buffer_store_short v{w+1}, v{t1}, {S(SWS,4)}, s56 offen")
    A("s_endpgm")
    v.release(m0)
    A.label("K1_LN")
    A("s_sub_u32 s49, s2, 112")
    A("s_lshl_b32 s49, s49, 2")
    A("s_add_u32 s49, s49, s48")
    A("s_lshl_b32 s49, s49, 3")
    gen_ln_rows(A, v, SX, SWS, 49, WS_XH, None, lane)
    A("s_endpgm")
    A.label("K1_PACK")
    A("s_sub_u32 s49, s2, 176")
    A("s_lshl_b32 s49, s49, 2")
    A("s_add_u32 s49, s49, s48")
    A("s_mul_i32 s50, s49, 171")
    A("s_lshr_b32 s50, s50, 10")
    A("s_mul_i32 s51, s50, 6")
    A("s_sub_u32 s51, s49, s51")
    A("s_mul_i32 s51, s51, 6")
    m = v.get(); h = v.get(); voff = v.get(); t0 = v.get(); t1 = v.get(); vo = v.get()
    e = v.get(48, 4); o = v.get(24, 4)
    A(f"v_and_b32 v{m}, 31, v{lane}")
    A(f"v_lshrrev_b32 v{h}, 5, v{lane}")
    A("s_mul_i32 s52, s49, 6144")
    A(f"s_add_u32 s52, s52, {WS_WQKV}")
    A(f"v_lshlrev_b32 v{vo}, 4, v{lane}")
    A("s_cmp_ge_u32 s50, 20")
    A("s_cbranch_scc1 K1_PACK_KV")
    A("s_lshl_b32 s53, s50, 5")
    A(f"v_add_u32 v{t0}, s53, v{m}")
    A(f"v_mul_u32_u24 v{t1}, 3277, v{t0}")
    A(f"v_lshrrev_b32 v{t1}, 16, v{t1}")
    A(f"v_mul_u32_u24 v{voff}, 20, v{t1}")
    A(f"v_sub_u32 v{t0}, v{t0}, v{voff}")
    A(f"v_mul_u32_u24 v{voff}, 18, v{t1}")
    A(f"v_add_u32 v{voff}, v{voff}, v{t0}")
    A(f"v_lshlrev_b32 v{voff}, 1, v{voff}")
    A(f"v_mul_u32_u24 v{t1}, {8*1152}, v{h}")
    A(f"v_add_u32 v{voff}, v{voff}, v{t1}")
    A(f"v_mov_b32 v{t1}, {OOB}")
    A(f"v_cmp_gt_u32 vcc, 18, v{t0}")
    A(f"v_cndmask_b32 v{voff}, v{t1}, v{voff}, vcc")
    def packloads(srd, stride):
        A(f"s_mul_i32 s54, s51, {16*stride}")
        for f in range(6):
            for j in range(8):
                A(f"buffer_load_ushort v{e+8*f+j}, v{voff}, {S(srd,4)}, s54 offen")
                A(f"s_add_u32 s54, s54, {stride if j < 7 else 9*stride}")
    packloads(SWQ, 1152)
    A("s_branch K1_PACK_ST")
    A.label("K1_PACK_KV")
    A(f"v_lshlrev_b32 v{voff}, 1, v{m}")
    A(f"v_mul_u32_u24 v{t1}, {8*36}, v{h}")
    A(f"v_add_u32 v{voff}, v{voff}, v{t1}")
    A(f"v_mov_b32 v{t1}, {OOB}")
    A(f"v_cmp_gt_u32 vcc, 18, v{m}")
    A(f"v_cndmask_b32 v{voff}, v{t1}, v{voff}, vcc")
    A("s_cmp_eq_u32 s50, 21")
    A("s_cbranch_scc1 K1_PACK_V")
    packloads(SWK, 36)
    A("s_branch K1_PACK_ST")
    A.label("K1_PACK_V")
    packloads(SWV, 36)
    A.label("K1_PACK_ST")
    for f in range(6):
        A(f"s_waitcnt vmcnt({40-8*f + f})")
        for q in range(4):
            A(f"v_lshl_or_b32 v{o+4*f+q}, v{e+8*f+2*q+1}, 16, v{e+8*f+2*q}")
        A(f"buffer_store_dwordx4 {V(o+4*f,4)}, v{vo}, {S(SWS,4)}, s52 offen offset:{1024*f if f < 4 else 0}" if f < 4 else
          f"buffer_store_dwordx4 {V(o+4*f,4)}, v{vo}, {S(SWS,4)}, s52 offen offset:{1024*(f-4)}")
        if f == 3: A("s_add_u32 s52, s52, 4096")
    A.label("K1_END")
    A("s_endpgm")
    return name, A.finish(), kernel_desc(name, v.hi, 64), f"; @launch kernel={name} grid=({NWG1},1,1) block=(256,1,1) lds=2048"
```

```python
import sys, importlib
sys.path.insert(0, "gen")
from common import *
import k1
OUT = "adaLN_cond__grouped_kv_mqa__glu_gated_reglu__prompt.s"

def build(gens, out=OUT):
    ks = [g() for g in gens]
    txt = "; adaLN + MQA attention + ReGLU FFN block, multi-launch pipeline (generated by gen/gen.py)\n"
    for k in ks: txt += k[3] + "\n"
    txt += '.amdgcn_target "amdgcn-amd-amdhsa--gfx950"\n.text\n'
    for k in ks: txt += kernel_header(k[0]) + k[1]
    txt += 'TEXT_END:\n    s_endpgm\n.section .rodata,"a"\n'
    for k in ks: txt += k[2]
    open(out, "w").write(txt)

if __name__ == "__main__":
    gens = [k1.gen_k1]
    for mod, fn in (("k2", "gen_k2"), ("k3", "gen_k3"), ("k4", "gen_k4"), ("k5", "gen_k5"), ("k6", "gen_k6"), ("k6", "gen_k7")):
        try:
            m = importlib.import_module(mod)
        except ModuleNotFoundError:
            break
        if fn == "gen_k7" and os.environ.get("K6FUSE", "1") == "1": continue
        if os.environ.get("K56", "1") == "1":
            if fn == "gen_k6": continue
            if fn == "gen_k5": m = importlib.import_module("k56"); fn = "gen_k56"
        gens.append(getattr(m, fn))
    build(gens, sys.argv[1] if len(sys.argv) > 1 else OUT)
```

```python
from asmlib import *

S_, D_, H_, DH, F_ = 2048, 576, 32, 18, 4608
KA = dict(x=0, wq=8, wk=16, wv=24, wo=32, bx=40, wg=48, wu=56, wd=64, c=72, wmod=80, out=88, dbg=96, ws=104)
SZ = dict(x=2048*576*2, wq=576*576*2, wk=576*18*2, wv=576*18*2, wo=576*576*2, wg=576*4608*2, wu=576*4608*2,
          wd=4608*576*2, c=576*2, wmod=576*3456*2, out=2048*576*2, dbg=256, ws=0x10000000)
WS_MODT = 0x0
WS_MODB = 0x8000
WS_XH   = 0x100000
WS_WQKV = 0x400000
WS_QF   = 0x500000
WS_KV   = 0x800000
WS_OF   = 0x900000
WS_WOP  = 0xC00000
WS_X1F  = 0xD00000
WS_X1P  = 0x1000000
WS_STAT = 0x1300000
WS_UW   = 0x1380000
WS_W1P  = 0x1400000
WS_W2P  = 0x2000000
WS_HF   = 0x2800000
WS_PART = 0x4000000
KVB = 2432
OOB = 0x40000000

def load_ptrs(A, names, sbase):
    r = {}
    for i, n in enumerate(names):
        A(f"s_load_dwordx2 s[{sbase+2*i}:{sbase+2*i+1}], s[0:1], {KA[n]}")
        r[n] = sbase + 2 * i
    return r

def make_srd(A, srd, ptr, nbytes, off=0):
    if off:
        A(f"s_add_u32 s{srd}, s{ptr}, {off}")
        A(f"s_addc_u32 s{srd+1}, s{ptr+1}, 0")
    else:
        A(f"s_mov_b32 s{srd}, s{ptr}")
        A(f"s_mov_b32 s{srd+1}, s{ptr+1}")
    A(f"s_mov_b32 s{srd+2}, {nbytes}")
    A(f"s_mov_b32 s{srd+3}, 0x00020000")

import struct
def f32bits(x):
    return "0x%08x" % struct.unpack("<I", struct.pack("<f", x))[0]

def magic_div(d, nmax):
    for sh in range(1, 32):
        mul = (1 << sh) // d + 1
        if mul * nmax >= (1 << 32): break
        if all((n * mul) >> sh == n // d for n in range(nmax + 1)):
            return mul, sh
    raise ValueError("no magic")

def s_divmod(A, sq, sr, sn, d, nmax):
    mul, sh = magic_div(d, nmax)
    A(f"s_mul_i32 s{sq}, s{sn}, {mul}")
    A(f"s_lshr_b32 s{sq}, s{sq}, {sh}")
    if sr is not None:
        A(f"s_mul_i32 s{sr}, s{sq}, {d}")
        A(f"s_sub_u32 s{sr}, s{sn}, s{sr}")

class VM:
    def __init__(self, A): self.A = A; self.ops = []
    def issue(self, text, tag=None):
        self.A(text); self.ops.append(tag)
    def count_after(self, tag):
        idx = max(i for i, t in enumerate(self.ops) if t == tag)
        return len(self.ops) - 1 - idx
    def wait(self, tag, extra=""):
        n = self.count_after(tag)
        assert n <= 63, n
        self.A(f"s_waitcnt vmcnt({n}){extra}")

import os
DIAG = os.environ.get("DIAG", "") != ""
WS_DBG = 0x8000000
STAMP_S = 84
def stamp(A, i, cyc=False):
    if not DIAG: return
    A(f"{'s_memtime' if cyc else 's_memrealtime'} s[{STAMP_S+2*i}:{STAMP_S+2*i+1}]")
    A("s_waitcnt lgkmcnt(0)")
def stamp_init(A):
    if not DIAG: return
    for i in range(16): A(f"s_mov_b32 s{STAMP_S+i}, 0")
def stamp_flush(A, kid, srd_ws, swave, vtmp):
    if not DIAG: return
    A("s_waitcnt vmcnt(0) lgkmcnt(0)")
    A(f"s_memrealtime s[{STAMP_S+14}:{STAMP_S+15}]")
    A("s_waitcnt lgkmcnt(0)")
    for i in range(8): A(f"v_mov_b32 v{vtmp+i}, s{STAMP_S+2*i}")
    A(f"s_add_u32 s100, s2, {kid*272}")
    A("s_lshl_b32 s100, s100, 4")
    A(f"s_add_u32 s100, s100, s{swave}")
    A("s_lshl_b32 s100, s100, 5")
    A(f"s_add_u32 s100, s100, {WS_DBG}")
    A(f"v_mov_b32 v{vtmp+8}, 0")
    A(f"buffer_store_dwordx4 {V(vtmp,4)}, v{vtmp+8}, {S(srd_ws,4)}, s100 offen")
    A(f"buffer_store_dwordx4 {V(vtmp+4,4)}, v{vtmp+8}, {S(srd_ws,4)}, s100 offen offset:16")

def pair_tiles(kk):
    c, r = divmod(kk, 9)
    if r < 8:
        t0 = 18 * c + 9 * (r >> 2) + 2 * (r & 3)
        return t0, t0 + 1
    return 18 * c + 8, 18 * c + 17

def kperm(nkk):
    out = []
    for kk in range(nkk):
        T = pair_tiles(kk)
        for g in range(4):
            for j in range(8):
                out.append(16 * T[j >> 2] + 4 * g + (j & 3))
    return out

class Cnt:
    def __init__(self, maxv): self.ops = []; self.maxv = maxv; self.done = 0
    def issue(self, tag): self.ops.append(tag)
    def need(self, tag):
        idx = max(i for i, t in enumerate(self.ops) if t == tag)
        if idx < self.done: return None
        n = len(self.ops) - 1 - idx
        n = min(n, self.maxv)
        self.done = len(self.ops) - n
        return n

class Sync:
    def __init__(self, A): self.A = A; self.vm = Cnt(63); self.lg = Cnt(15)
    def vmem(self, text, tag=None):
        self.A(text); self.vm.issue(tag)
        assert len(self.vm.ops) - self.vm.done <= 63, "too many vmem ops in flight"
    def lds(self, text, tag=None):
        self.A(text); self.lg.issue(tag)
    def wait(self, vm=None, lg=None):
        parts = []
        if vm is not None:
            n = self.vm.need(vm)
            if n is not None: parts.append(f"vmcnt({n})")
        if lg is not None:
            n = self.lg.need(lg)
            if n is not None: parts.append(f"lgkmcnt({n})")
        if parts: self.A("s_waitcnt " + " ".join(parts))
    def drain(self):
        self.A("s_waitcnt vmcnt(0) lgkmcnt(0)")
        self.vm.done = len(self.vm.ops); self.lg.done = len(self.lg.ops)

def code_prefetch(A, nbytes_label_end, vtid, vtmp, stmp, nthreads, nbytes):
    if os.environ.get("NOPF", ""): return
    A(f"s_getpc_b64 s[{stmp}:{stmp+1}]")
    A(f"v_lshlrev_b32 v{vtmp}, 4, v{vtid}")
    per = nthreads * 16
    n = (nbytes + per - 1) // per
    for i in range(n):
        A(f"global_load_dwordx4 {V(vtmp+2,4)}, v{vtmp}, s[{stmp}:{stmp+1}]")
        if i < n - 1: A(f"v_add_u32 v{vtmp}, {per}, v{vtmp}")
    return n
```

```python
from common import *

def gen_ln_rows(A, v, srd_in, srd_out, s_row0, out_base, modulate=None, vtid=0):
    m0 = v.mark()
    vr = v.get(); vsub = v.get(); voff = v.get(); vo = v.get(); t0 = v.get(); t1 = v.get()
    raw = v.get(36, 4)
    x = v.get(72, 2)
    A(f"v_lshrrev_b32 v{vr}, 3, v{vtid}")
    A(f"v_and_b32 v{vsub}, 7, v{vtid}")
    A(f"v_add_u32 v{vr}, {S(s_row0)}, v{vr}")
    A(f"v_mul_u32_u24 v{voff}, 1152, v{vr}")
    A(f"v_lshl_add_u32 v{voff}, v{vsub}, 4, v{voff}")
    for i in range(9):
        A(f"buffer_load_dwordx4 {V(raw+4*i,4)}, v{voff}, {S(srd_in,4)}, 0 offen offset:{128*i}")
    if modulate:
        srd_ws, off_a, off_b = modulate
        ma = v.get(36, 4); mb = v.get(36, 4); vm = v.get()
        A(f"v_lshlrev_b32 v{vm}, 4, v{vsub}")
        A(f"v_add_u32 v{t0}, {off_a}, v{vm}")
        A(f"v_add_u32 v{t1}, {off_b}, v{vm}")
        for i in range(9):
            A(f"buffer_load_dwordx4 {V(ma+4*i,4)}, v{t0}, {S(srd_ws,4)}, 0 offen offset:{128*i}")
            A(f"buffer_load_dwordx4 {V(mb+4*i,4)}, v{t1}, {S(srd_ws,4)}, 0 offen offset:{128*i}")
    A(f"v_lshrrev_b32 v{t0}, 5, v{vr}")
    A(f"v_mul_u32_u24 v{vo}, {36*1024}, v{t0}")
    A(f"v_and_b32 v{t0}, 31, v{vr}")
    A(f"v_lshl_add_u32 v{vo}, v{t0}, 4, v{vo}")
    A(f"v_lshl_add_u32 v{vo}, v{vsub}, 9, v{vo}")
    A(f"v_add_u32 v{vo}, {out_base}, v{vo}")
    sm = v.get(); sq = v.get()
    for i in range(9):
        A(f"s_waitcnt vmcnt({(8-i) + (18 if modulate else 0)})")
        for q in range(4):
            A(f"v_lshlrev_b32 v{x+8*i+2*q}, 16, v{raw+4*i+q}")
            A(f"v_and_b32 v{x+8*i+2*q+1}, 0xffff0000, v{raw+4*i+q}")
        for q in range(8):
            if i == 0 and q == 0:
                A(f"v_mov_b32 v{sm}, v{x}")
            else:
                A(f"v_add_f32 v{sm}, v{sm}, v{x+8*i+q}")
    def red8(r):
        A(f"v_add_f32_dpp v{r}, v{r}, v{r} quad_perm:[1,0,3,2] row_mask:0xf bank_mask:0xf")
        A(f"v_add_f32_dpp v{r}, v{r}, v{r} quad_perm:[2,3,0,1] row_mask:0xf bank_mask:0xf")
        A(f"v_add_f32_dpp v{r}, v{r}, v{r} row_half_mirror row_mask:0xf bank_mask:0xf")
    stamp(A, 2)
    red8(sm)
    A(f"v_mul_f32 v{sm}, {f32bits(1.0/576)}, v{sm}")
    for e in range(72):
        A(f"v_sub_f32 v{t0 if e%2==0 else t1}, v{x+e}, v{sm}")
        tt = t0 if e % 2 == 0 else t1
        if e == 0:
            A(f"v_mul_f32 v{sq}, v{tt}, v{tt}")
        else:
            A(f"v_fmac_f32 v{sq}, v{tt}, v{tt}")
    red8(sq)
    A(f"v_mul_f32 v{sq}, {f32bits(1.0/576)}, v{sq}")
    A(f"v_cvt_pk_bf16_f32 v{t0}, v{sm}, v{sq}")
    A(f"v_lshlrev_b32 v{sm}, 16, v{t0}")
    A(f"v_and_b32 v{sq}, 0xffff0000, v{t0}")
    A(f"v_add_f32 v{sq}, {f32bits(1e-5)}, v{sq}")
    A(f"v_cvt_pk_bf16_f32 v{t0}, v{sq}, v{sq}")
    A(f"v_lshlrev_b32 v{sq}, 16, v{t0}")
    A(f"v_sqrt_f32 v{sq}, v{sq}")
    A(f"v_cvt_pk_bf16_f32 v{t0}, v{sq}, v{sq}")
    A(f"v_lshlrev_b32 v{sq}, 16, v{t0}")
    A(f"v_rcp_f32 v{sq}, v{sq}")
    if modulate:
        A("s_waitcnt vmcnt(0)")
    u0, u1, u2, u3 = v.get(), v.get(), v.get(), v.get()
    for i in range(9):
        for q in range(4):
            a, b = x + 8 * i + 2 * q, x + 8 * i + 2 * q + 1
            A(f"v_sub_f32 v{a}, v{a}, v{sm}")
            A(f"v_sub_f32 v{b}, v{b}, v{sm}")
            A(f"v_cvt_pk_bf16_f32 v{t0}, v{a}, v{b}")
            A(f"v_lshlrev_b32 v{a}, 16, v{t0}")
            A(f"v_and_b32 v{b}, 0xffff0000, v{t0}")
            A(f"v_mul_f32 v{a}, v{a}, v{sq}")
            A(f"v_mul_f32 v{b}, v{b}, v{sq}")
            A(f"v_cvt_pk_bf16_f32 v{raw+4*i+q}, v{a}, v{b}")
            if modulate:
                A(f"v_lshlrev_b32 v{a}, 16, v{raw+4*i+q}")
                A(f"v_and_b32 v{b}, 0xffff0000, v{raw+4*i+q}")
                A(f"v_lshlrev_b32 v{u0}, 16, v{ma+4*i+q}")
                A(f"v_and_b32 v{u1}, 0xffff0000, v{ma+4*i+q}")
                A(f"v_mul_f32 v{a}, v{a}, v{u0}")
                A(f"v_mul_f32 v{b}, v{b}, v{u1}")
                A(f"v_cvt_pk_bf16_f32 v{t0}, v{a}, v{b}")
                A(f"v_lshlrev_b32 v{a}, 16, v{t0}")
                A(f"v_and_b32 v{b}, 0xffff0000, v{t0}")
                A(f"v_lshlrev_b32 v{u2}, 16, v{mb+4*i+q}")
                A(f"v_and_b32 v{u3}, 0xffff0000, v{mb+4*i+q}")
                A(f"v_add_f32 v{a}, v{a}, v{u2}")
                A(f"v_add_f32 v{b}, v{b}, v{u3}")
                A(f"v_cvt_pk_bf16_f32 v{raw+4*i+q}, v{a}, v{b}")
        if i == 0:
            A(f"buffer_store_dwordx4 {V(raw+4*i,4)}, v{vo}, {S(srd_out,4)}, 0 offen")
        else:
            A(f"v_add_u32 v{vo}, 4096, v{vo}")
            A(f"buffer_store_dwordx4 {V(raw+4*i,4)}, v{vo}, {S(srd_out,4)}, 0 offen")
    v.release(m0)

NWG1 = 209
def gen_k1():
    A = Asm()
    v = Alloc("v", 1, 256)
    name = "k1_prep_kernel"
    A(f"s_cmp_ge_u32 s2, {NWG1}")
    A("s_cbranch_scc1 K1_END")
    stamp_init(A); stamp(A, 0)
    p = load_ptrs(A, ["x", "wq", "wk", "wv", "c", "wmod", "ws"], 4)
    SX, SWQ, SWK, SWV, SC, SWM, SWS = 20, 24, 28, 32, 36, 40, 44
    lane = v.get(); wv = v.get()
    A(f"v_and_b32 v{lane}, 63, v0")
    A(f"v_lshrrev_b32 v{wv}, 6, v0")
    A(f"v_readfirstlane_b32 s48, v{wv}")
    A("s_waitcnt lgkmcnt(0)")
    make_srd(A, SX, p["x"], SZ["x"]); make_srd(A, SWQ, p["wq"], SZ["wq"]); make_srd(A, SWK, p["wk"], SZ["wk"])
    make_srd(A, SWV, p["wv"], SZ["wv"]); make_srd(A, SC, p["c"], SZ["c"]); make_srd(A, SWM, p["wmod"], SZ["wmod"])
    make_srd(A, SWS, p["ws"], SZ["ws"])
    stamp(A, 1)
    A("s_cmp_ge_u32 s2, 176")
    A("s_cbranch_scc1 K1_PACK")
    A("s_cmp_ge_u32 s2, 112")
    A("s_cbranch_scc1 K1_LN")
    m0 = v.mark()
    A("s_and_b32 s49, s2, 7")
    A("s_lshr_b32 s50, s2, 3")
    A("s_and_b32 s51, s50, 1")
    A("s_lshr_b32 s50, s50, 1")
    A("s_lshl_b32 s50, s50, 3")
    A("s_add_u32 s50, s50, s49")
    A("s_cmp_ge_u32 s50, 54")
    A("s_cbranch_scc1 K1_END")
    A("s_lshl_b32 s50, s50, 1")
    A("s_add_u32 s50, s50, s51")
    cg = v.get(); rg = v.get(); voff = v.get(); vco = v.get(); t0 = v.get(); t1 = v.get()
    w = v.get(36, 4); cv = v.get(9); acc = v.get(8, 4)
    A(f"v_and_b32 v{cg}, 3, v0")
    A(f"v_lshrrev_b32 v{rg}, 2, v0")
    A(f"v_mul_u32_u24 v{voff}, 6912, v{rg}")
    A(f"v_lshl_add_u32 v{voff}, v{cg}, 4, v{voff}")
    A("s_lshl_b32 s52, s50, 6")
    A(f"v_lshlrev_b32 v{vco}, 1, v{rg}")
    for i in range(9):
        A(f"buffer_load_ushort v{cv+i}, v{vco}, {S(SC,4)}, 0 offen offset:{128*i}")
    for i in range(9):
        A(f"buffer_load_dwordx4 {V(w+4*i,4)}, v{voff}, {S(SWM,4)}, s52 offen")
        if i < 8: A(f"s_add_u32 s52, s52, {64*6912}")
    A("s_waitcnt vmcnt(9)")
    for i in range(9):
        A(f"v_lshlrev_b32 v{cv+i}, 16, v{cv+i}")
        A(f"v_mul_f32 v{t0}, {f32bits(-1.4426950408889634)}, v{cv+i}")
        A(f"v_exp_f32 v{t0}, v{t0}")
        A(f"v_add_f32 v{t0}, 1.0, v{t0}")
        A(f"v_rcp_f32 v{t0}, v{t0}")
        A(f"v_mul_f32 v{t0}, v{t0}, v{cv+i}")
        A(f"v_cvt_pk_bf16_f32 v{t0}, v{t0}, v{t0}")
        A(f"v_lshlrev_b32 v{cv+i}, 16, v{t0}")
    stamp(A, 2)
    for e in range(8):
        A(f"v_mov_b32 v{acc+e}, 0")
    for i in range(9):
        A(f"s_waitcnt vmcnt({8-i})")
        for q in range(4):
            A(f"v_lshlrev_b32 v{t0}, 16, v{w+4*i+q}")
            A(f"v_and_b32 v{t1}, 0xffff0000, v{w+4*i+q}")
            A(f"v_fmac_f32 v{acc+2*q}, v{t0}, v{cv+i}")
            A(f"v_fmac_f32 v{acc+2*q+1}, v{t1}, v{cv+i}")
    stamp(A, 3)
    for sh in (4, 8):
        for e in range(8):
            A(f"v_add_f32_dpp v{acc+e}, v{acc+e}, v{acc+e} row_ror:{sh} row_mask:0xf bank_mask:0xf")
    A(f"v_lshrrev_b32 v{t0}, 4, v0")
    A(f"v_lshlrev_b32 v{t0}, 7, v{t0}")
    A(f"v_lshl_add_u32 v{t0}, v{cg}, 5, v{t0}")
    A(f"ds_write_b128 v{t0}, {V(acc,4)}")
    A(f"ds_write_b128 v{t0}, {V(acc+4,4)} offset:16")
    A("s_waitcnt lgkmcnt(0)")
    A("s_barrier")
    A("s_cmp_lg_u32 s48, 0")
    A("s_cbranch_scc1 K1_END")
    A(f"v_and_b32 v{t1}, 31, v{lane}")
    A(f"v_lshlrev_b32 v{t0}, 2, v{t1}")
    for pz in range(16):
        A(f"ds_read_b32 v{w+pz}, v{t0} offset:{128*pz}")
    A("s_waitcnt lgkmcnt(0)")
    for pz in range(1, 16):
        A(f"v_add_f32 v{w}, v{w}, v{w+pz}")
    A(f"v_cvt_pk_bf16_f32 v{w}, v{w}, v{w}")
    A(f"v_lshlrev_b32 v{w}, 16, v{w}")
    A("s_mul_i32 s53, s50, 57")
    A("s_lshr_b32 s53, s53, 10")
    A("s_mov_b32 s54, 0")
    A("s_cmp_eq_u32 s53, 1")
    A("s_cselect_b32 s54, 1.0, s54")
    A("s_cmp_eq_u32 s53, 4")
    A("s_cselect_b32 s54, 1.0, s54")
    A(f"v_add_f32 v{w}, s54, v{w}")
    A(f"v_cvt_pk_bf16_f32 v{w+1}, v{w}, v{w}")
    A(f"v_lshlrev_b32 v{w}, 16, v{w+1}")
    A("s_lshl_b32 s55, s50, 7")
    A("s_lshl_b32 s56, s50, 6")
    A(f"s_add_u32 s56, s56, {WS_MODB}")
    A(f"v_lshlrev_b32 v{t1}, 1, v{t1}")
    A(f"buffer_store_dword v{w}, v{t0}, {S(SWS,4)}, s55 offen")
    A(f"buffer_store_short v{w+1}, v{t1}, {S(SWS,4)}, s56 offen")
    stamp_flush(A, 0, SWS, 48, w+4)
    A("s_endpgm")
    v.release(m0)
    A.label("K1_LN")
    A("s_sub_u32 s49, s2, 112")
    A("s_lshl_b32 s49, s49, 2")
    A("s_add_u32 s49, s49, s48")
    A("s_lshl_b32 s49, s49, 3")
    gen_ln_rows(A, v, SX, SWS, 49, WS_XH, None, lane)
    A("s_add_u32 s48, s48, 4")
    stamp_flush(A, 0, SWS, 48, 12)
    A("s_endpgm")
    A.label("K1_PACK")
    A("s_sub_u32 s49, s2, 176")
    A("s_lshl_b32 s49, s49, 2")
    A("s_add_u32 s49, s49, s48")
    A("s_mul_i32 s50, s49, 171")
    A("s_lshr_b32 s50, s50, 10")
    A("s_mul_i32 s51, s50, 6")
    A("s_sub_u32 s51, s49, s51")
    A("s_mul_i32 s51, s51, 6")
    m = v.get(); h = v.get(); voff = v.get(); t0 = v.get(); t1 = v.get(); vo = v.get()
    e = v.get(48, 4); o = v.get(24, 4)
    A(f"v_and_b32 v{m}, 31, v{lane}")
    A(f"v_lshrrev_b32 v{h}, 5, v{lane}")
    A("s_mul_i32 s52, s49, 6144")
    A(f"s_add_u32 s52, s52, {WS_WQKV}")
    A(f"v_lshlrev_b32 v{vo}, 4, v{lane}")
    A("s_cmp_ge_u32 s50, 20")
    A("s_cbranch_scc1 K1_PACK_KV")
    A("s_lshl_b32 s53, s50, 5")
    A(f"v_add_u32 v{t0}, s53, v{m}")
    A(f"v_mul_u32_u24 v{t1}, 3277, v{t0}")
    A(f"v_lshrrev_b32 v{t1}, 16, v{t1}")
    A(f"v_mul_u32_u24 v{voff}, 20, v{t1}")
    A(f"v_sub_u32 v{t0}, v{t0}, v{voff}")
    A(f"v_mul_u32_u24 v{voff}, 18, v{t1}")
    A(f"v_add_u32 v{voff}, v{voff}, v{t0}")
    A(f"v_lshlrev_b32 v{voff}, 1, v{voff}")
    A(f"v_mul_u32_u24 v{t1}, {8*1152}, v{h}")
    A(f"v_add_u32 v{voff}, v{voff}, v{t1}")
    A(f"v_mov_b32 v{t1}, {OOB}")
    A(f"v_cmp_gt_u32 vcc, 18, v{t0}")
    A(f"v_cndmask_b32 v{voff}, v{t1}, v{voff}, vcc")
    def packloads(srd, stride):
        A(f"s_mul_i32 s54, s51, {16*stride}")
        for f in range(6):
            for j in range(8):
                A(f"buffer_load_ushort v{e+8*f+j}, v{voff}, {S(srd,4)}, s54 offen")
                A(f"s_add_u32 s54, s54, {stride if j < 7 else 9*stride}")
    packloads(SWQ, 1152)
    A("s_branch K1_PACK_ST")
    A.label("K1_PACK_KV")
    A(f"v_lshlrev_b32 v{voff}, 1, v{m}")
    A(f"v_mul_u32_u24 v{t1}, {8*36}, v{h}")
    A(f"v_add_u32 v{voff}, v{voff}, v{t1}")
    A(f"v_mov_b32 v{t1}, {OOB}")
    A(f"v_cmp_gt_u32 vcc, 18, v{m}")
    A(f"v_cndmask_b32 v{voff}, v{t1}, v{voff}, vcc")
    A("s_cmp_eq_u32 s50, 21")
    A("s_cbranch_scc1 K1_PACK_V")
    packloads(SWK, 36)
    A("s_branch K1_PACK_ST")
    A.label("K1_PACK_V")
    packloads(SWV, 36)
    A.label("K1_PACK_ST")
    for f in range(6):
        A(f"s_waitcnt vmcnt({40-8*f + f})")
        for q in range(4):
            A(f"v_lshl_or_b32 v{o+4*f+q}, v{e+8*f+2*q+1}, 16, v{e+8*f+2*q}")
        A(f"buffer_store_dwordx4 {V(o+4*f,4)}, v{vo}, {S(SWS,4)}, s52 offen offset:{1024*f if f < 4 else 0}" if f < 4 else
          f"buffer_store_dwordx4 {V(o+4*f,4)}, v{vo}, {S(SWS,4)}, s52 offen offset:{1024*(f-4)}")
        if f == 3: A("s_add_u32 s52, s52, 4096")
    A("s_add_u32 s48, s48, 8")
    stamp_flush(A, 0, SWS, 48, e)
    A.label("K1_END")
    A("s_endpgm")
    return name, A.finish(), kernel_desc(name, v.hi, 64), f"; @launch kernel={name} grid=({NWG1},1,1) block=(256,1,1) lds=2048"
```

```python
from asmlib import *

S_, D_, H_, DH, F_ = 2048, 576, 32, 18, 4608
KA = dict(x=0, wq=8, wk=16, wv=24, wo=32, bx=40, wg=48, wu=56, wd=64, c=72, wmod=80, out=88, dbg=96, ws=104)
SZ = dict(x=2048*576*2, wq=576*576*2, wk=576*18*2, wv=576*18*2, wo=576*576*2, wg=576*4608*2, wu=576*4608*2,
          wd=4608*576*2, c=576*2, wmod=576*3456*2, out=2048*576*2, dbg=256, ws=0x10000000)
WS_MODT = 0x0
WS_MODB = 0x8000
WS_XH   = 0x100000
WS_WQKV = 0x400000
WS_QF   = 0x500000
WS_KV   = 0x800000
WS_OF   = 0x900000
WS_WOP  = 0xC00000
WS_X1   = 0xD00000
WS_H2F  = 0x1000000
WS_W1P  = 0x1400000
WS_W2P  = 0x2000000
WS_HF   = 0x2800000
OOB = 0x40000000

def load_ptrs(A, names, sbase):
    r = {}
    for i, n in enumerate(names):
        A(f"s_load_dwordx2 s[{sbase+2*i}:{sbase+2*i+1}], s[0:1], {KA[n]}")
        r[n] = sbase + 2 * i
    return r

def make_srd(A, srd, ptr, nbytes, off=0):
    if off:
        A(f"s_add_u32 s{srd}, s{ptr}, {off}")
        A(f"s_addc_u32 s{srd+1}, s{ptr+1}, 0")
    else:
        A(f"s_mov_b32 s{srd}, s{ptr}")
        A(f"s_mov_b32 s{srd+1}, s{ptr+1}")
    A(f"s_mov_b32 s{srd+2}, {nbytes}")
    A(f"s_mov_b32 s{srd+3}, 0x00020000")

import struct
def f32bits(x):
    return "0x%08x" % struct.unpack("<I", struct.pack("<f", x))[0]

def magic_div(d, nmax):
    for sh in range(1, 32):
        mul = (1 << sh) // d + 1
        if mul * nmax >= (1 << 32): break
        if all((n * mul) >> sh == n // d for n in range(nmax + 1)):
            return mul, sh
    raise ValueError("no magic")

def s_divmod(A, sq, sr, sn, d, nmax):
    mul, sh = magic_div(d, nmax)
    A(f"s_mul_i32 s{sq}, s{sn}, {mul}")
    A(f"s_lshr_b32 s{sq}, s{sq}, {sh}")
    if sr is not None:
        A(f"s_mul_i32 s{sr}, s{sq}, {d}")
        A(f"s_sub_u32 s{sr}, s{sn}, s{sr}")

class VM:
    def __init__(self, A): self.A = A; self.ops = []
    def issue(self, text, tag=None):
        self.A(text); self.ops.append(tag)
    def count_after(self, tag):
        idx = max(i for i, t in enumerate(self.ops) if t == tag)
        return len(self.ops) - 1 - idx
    def wait(self, tag, extra=""):
        n = self.count_after(tag)
        assert n <= 63, n
        self.A(f"s_waitcnt vmcnt({n}){extra}")

import os
DIAG = os.environ.get("DIAG", "") != ""
WS_DBG = 0x8000000
STAMP_S = 84
def stamp(A, i, cyc=False):
    if not DIAG: return
    A(f"{'s_memtime' if cyc else 's_memrealtime'} s[{STAMP_S+2*i}:{STAMP_S+2*i+1}]")
    A("s_waitcnt lgkmcnt(0)")
def stamp_init(A):
    if not DIAG: return
    for i in range(16): A(f"s_mov_b32 s{STAMP_S+i}, 0")
def stamp_flush(A, kid, srd_ws, swave, vtmp):
    if not DIAG: return
    A("s_waitcnt vmcnt(0) lgkmcnt(0)")
    A(f"s_memrealtime s[{STAMP_S+14}:{STAMP_S+15}]")
    A("s_waitcnt lgkmcnt(0)")
    for i in range(8): A(f"v_mov_b32 v{vtmp+i}, s{STAMP_S+2*i}")
    A(f"s_add_u32 s100, s2, {kid*272}")
    A("s_lshl_b32 s100, s100, 4")
    A(f"s_add_u32 s100, s100, s{swave}")
    A("s_lshl_b32 s100, s100, 5")
    A(f"s_add_u32 s100, s100, {WS_DBG}")
    A(f"v_mov_b32 v{vtmp+8}, 0")
    A(f"buffer_store_dwordx4 {V(vtmp,4)}, v{vtmp+8}, {S(srd_ws,4)}, s100 offen")
    A(f"buffer_store_dwordx4 {V(vtmp+4,4)}, v{vtmp+8}, {S(srd_ws,4)}, s100 offen offset:16")
```

```python
from common import *

def gen_ln_rows(A, v, srd_in, srd_out, s_row0, out_base, modulate=None, vtid=0):
    m0 = v.mark()
    vr = v.get(); vsub = v.get(); voff = v.get(); vo = v.get(); t0 = v.get(); t1 = v.get()
    raw = v.get(36, 4)
    x = v.get(72, 2)
    A(f"v_lshrrev_b32 v{vr}, 3, v{vtid}")
    A(f"v_and_b32 v{vsub}, 7, v{vtid}")
    A(f"v_add_u32 v{vr}, {S(s_row0)}, v{vr}")
    A(f"v_mul_u32_u24 v{voff}, 1152, v{vr}")
    A(f"v_lshl_add_u32 v{voff}, v{vsub}, 4, v{voff}")
    for i in range(9):
        A(f"buffer_load_dwordx4 {V(raw+4*i,4)}, v{voff}, {S(srd_in,4)}, 0 offen offset:{128*i}")
    if modulate:
        srd_ws, off_a, off_b = modulate
        ma = v.get(36, 4); mb = v.get(36, 4); vm = v.get()
        A(f"v_lshlrev_b32 v{vm}, 4, v{vsub}")
        A(f"v_add_u32 v{t0}, {off_a}, v{vm}")
        A(f"v_add_u32 v{t1}, {off_b}, v{vm}")
        for i in range(9):
            A(f"buffer_load_dwordx4 {V(ma+4*i,4)}, v{t0}, {S(srd_ws,4)}, 0 offen offset:{128*i}")
            A(f"buffer_load_dwordx4 {V(mb+4*i,4)}, v{t1}, {S(srd_ws,4)}, 0 offen offset:{128*i}")
    A(f"v_lshrrev_b32 v{t0}, 5, v{vr}")
    A(f"v_mul_u32_u24 v{vo}, {36*1024}, v{t0}")
    A(f"v_and_b32 v{t0}, 31, v{vr}")
    A(f"v_lshl_add_u32 v{vo}, v{t0}, 4, v{vo}")
    A(f"v_lshl_add_u32 v{vo}, v{vsub}, 9, v{vo}")
    A(f"v_add_u32 v{vo}, {out_base}, v{vo}")
    sm = v.get(); sq = v.get()
    for i in range(9):
        A(f"s_waitcnt vmcnt({(8-i) + (18 if modulate else 0)})")
        for q in range(4):
            A(f"v_lshlrev_b32 v{x+8*i+2*q}, 16, v{raw+4*i+q}")
            A(f"v_and_b32 v{x+8*i+2*q+1}, 0xffff0000, v{raw+4*i+q}")
        for q in range(8):
            if i == 0 and q == 0:
                A(f"v_mov_b32 v{sm}, v{x}")
            else:
                A(f"v_add_f32 v{sm}, v{sm}, v{x+8*i+q}")
    def red8(r):
        A(f"v_add_f32_dpp v{r}, v{r}, v{r} quad_perm:[1,0,3,2] row_mask:0xf bank_mask:0xf")
        A(f"v_add_f32_dpp v{r}, v{r}, v{r} quad_perm:[2,3,0,1] row_mask:0xf bank_mask:0xf")
        A(f"v_add_f32_dpp v{r}, v{r}, v{r} row_half_mirror row_mask:0xf bank_mask:0xf")
    stamp(A, 2)
    red8(sm)
    A(f"v_mul_f32 v{sm}, {f32bits(1.0/576)}, v{sm}")
    for e in range(72):
        A(f"v_sub_f32 v{t0 if e%2==0 else t1}, v{x+e}, v{sm}")
        tt = t0 if e % 2 == 0 else t1
        if e == 0:
            A(f"v_mul_f32 v{sq}, v{tt}, v{tt}")
        else:
            A(f"v_fmac_f32 v{sq}, v{tt}, v{tt}")
    red8(sq)
    A(f"v_mul_f32 v{sq}, {f32bits(1.0/576)}, v{sq}")
    A(f"v_cvt_pk_bf16_f32 v{t0}, v{sm}, v{sq}")
    A(f"v_lshlrev_b32 v{sm}, 16, v{t0}")
    A(f"v_and_b32 v{sq}, 0xffff0000, v{t0}")
    A(f"v_add_f32 v{sq}, {f32bits(1e-5)}, v{sq}")
    A(f"v_cvt_pk_bf16_f32 v{t0}, v{sq}, v{sq}")
    A(f"v_lshlrev_b32 v{sq}, 16, v{t0}")
    A(f"v_sqrt_f32 v{sq}, v{sq}")
    A(f"v_cvt_pk_bf16_f32 v{t0}, v{sq}, v{sq}")
    A(f"v_lshlrev_b32 v{sq}, 16, v{t0}")
    A(f"v_rcp_f32 v{sq}, v{sq}")
    if modulate:
        A("s_waitcnt vmcnt(0)")
    u0, u1, u2, u3 = v.get(), v.get(), v.get(), v.get()
    for i in range(9):
        for q in range(4):
            a, b = x + 8 * i + 2 * q, x + 8 * i + 2 * q + 1
            A(f"v_sub_f32 v{a}, v{a}, v{sm}")
            A(f"v_sub_f32 v{b}, v{b}, v{sm}")
            A(f"v_cvt_pk_bf16_f32 v{t0}, v{a}, v{b}")
            A(f"v_lshlrev_b32 v{a}, 16, v{t0}")
            A(f"v_and_b32 v{b}, 0xffff0000, v{t0}")
            A(f"v_mul_f32 v{a}, v{a}, v{sq}")
            A(f"v_mul_f32 v{b}, v{b}, v{sq}")
            A(f"v_cvt_pk_bf16_f32 v{raw+4*i+q}, v{a}, v{b}")
            if modulate:
                A(f"v_lshlrev_b32 v{a}, 16, v{raw+4*i+q}")
                A(f"v_and_b32 v{b}, 0xffff0000, v{raw+4*i+q}")
                A(f"v_lshlrev_b32 v{u0}, 16, v{ma+4*i+q}")
                A(f"v_and_b32 v{u1}, 0xffff0000, v{ma+4*i+q}")
                A(f"v_mul_f32 v{a}, v{a}, v{u0}")
                A(f"v_mul_f32 v{b}, v{b}, v{u1}")
                A(f"v_cvt_pk_bf16_f32 v{t0}, v{a}, v{b}")
                A(f"v_lshlrev_b32 v{a}, 16, v{t0}")
                A(f"v_and_b32 v{b}, 0xffff0000, v{t0}")
                A(f"v_lshlrev_b32 v{u2}, 16, v{mb+4*i+q}")
                A(f"v_and_b32 v{u3}, 0xffff0000, v{mb+4*i+q}")
                A(f"v_add_f32 v{a}, v{a}, v{u2}")
                A(f"v_add_f32 v{b}, v{b}, v{u3}")
                A(f"v_cvt_pk_bf16_f32 v{raw+4*i+q}, v{a}, v{b}")
        if i == 0:
            A(f"buffer_store_dwordx4 {V(raw+4*i,4)}, v{vo}, {S(srd_out,4)}, 0 offen")
        else:
            A(f"v_add_u32 v{vo}, 4096, v{vo}")
            A(f"buffer_store_dwordx4 {V(raw+4*i,4)}, v{vo}, {S(srd_out,4)}, 0 offen")
    v.release(m0)

NWG1 = 209 + 8
TEXT_BYTES = 56 * 1024
def gen_k1():
    A = Asm()
    v = Alloc("v", 1, 256)
    name = "k1_prep_kernel"
    A(f"s_cmp_ge_u32 s2, {NWG1}")
    A("s_cbranch_scc1 K1_END")
    A("s_cmp_ge_u32 s2, 209")
    A("s_cbranch_scc1 K1_PF")
    stamp_init(A); stamp(A, 0)
    p = load_ptrs(A, ["x", "wq", "wk", "wv", "c", "wmod", "ws"], 4)
    SX, SWQ, SWK, SWV, SC, SWM, SWS = 20, 24, 28, 32, 36, 40, 44
    lane = v.get(); wv = v.get()
    A(f"v_and_b32 v{lane}, 63, v0")
    A(f"v_lshrrev_b32 v{wv}, 6, v0")
    A(f"v_readfirstlane_b32 s48, v{wv}")
    A("s_waitcnt lgkmcnt(0)")
    make_srd(A, SX, p["x"], SZ["x"]); make_srd(A, SWQ, p["wq"], SZ["wq"]); make_srd(A, SWK, p["wk"], SZ["wk"])
    make_srd(A, SWV, p["wv"], SZ["wv"]); make_srd(A, SC, p["c"], SZ["c"]); make_srd(A, SWM, p["wmod"], SZ["wmod"])
    make_srd(A, SWS, p["ws"], SZ["ws"])
    stamp(A, 1)
    A("s_cmp_ge_u32 s2, 176")
    A("s_cbranch_scc1 K1_PACK")
    A("s_cmp_ge_u32 s2, 112")
    A("s_cbranch_scc1 K1_LN")
    m0 = v.mark()
    A("s_and_b32 s49, s2, 7")
    A("s_lshr_b32 s50, s2, 3")
    A("s_and_b32 s51, s50, 1")
    A("s_lshr_b32 s50, s50, 1")
    A("s_lshl_b32 s50, s50, 3")
    A("s_add_u32 s50, s50, s49")
    A("s_cmp_ge_u32 s50, 54")
    A("s_cbranch_scc1 K1_END")
    A("s_lshl_b32 s50, s50, 1")
    A("s_add_u32 s50, s50, s51")
    cg = v.get(); rg = v.get(); voff = v.get(); vco = v.get(); t0 = v.get(); t1 = v.get()
    w = v.get(36, 4); cv = v.get(9); acc = v.get(8, 4)
    A(f"v_and_b32 v{cg}, 3, v0")
    A(f"v_lshrrev_b32 v{rg}, 2, v0")
    A(f"v_mul_u32_u24 v{voff}, 6912, v{rg}")
    A(f"v_lshl_add_u32 v{voff}, v{cg}, 4, v{voff}")
    A("s_lshl_b32 s52, s50, 6")
    A(f"v_lshlrev_b32 v{vco}, 1, v{rg}")
    for i in range(9):
        A(f"buffer_load_ushort v{cv+i}, v{vco}, {S(SC,4)}, 0 offen offset:{128*i}")
    for i in range(9):
        A(f"buffer_load_dwordx4 {V(w+4*i,4)}, v{voff}, {S(SWM,4)}, s52 offen")
        if i < 8: A(f"s_add_u32 s52, s52, {64*6912}")
    A("s_waitcnt vmcnt(9)")
    for i in range(9):
        A(f"v_lshlrev_b32 v{cv+i}, 16, v{cv+i}")
        A(f"v_mul_f32 v{t0}, {f32bits(-1.4426950408889634)}, v{cv+i}")
        A(f"v_exp_f32 v{t0}, v{t0}")
        A(f"v_add_f32 v{t0}, 1.0, v{t0}")
        A(f"v_rcp_f32 v{t0}, v{t0}")
        A(f"v_mul_f32 v{t0}, v{t0}, v{cv+i}")
        A(f"v_cvt_pk_bf16_f32 v{t0}, v{t0}, v{t0}")
        A(f"v_lshlrev_b32 v{cv+i}, 16, v{t0}")
    stamp(A, 2)
    for e in range(8):
        A(f"v_mov_b32 v{acc+e}, 0")
    for i in range(9):
        A(f"s_waitcnt vmcnt({8-i})")
        for q in range(4):
            A(f"v_lshlrev_b32 v{t0}, 16, v{w+4*i+q}")
            A(f"v_and_b32 v{t1}, 0xffff0000, v{w+4*i+q}")
            A(f"v_fmac_f32 v{acc+2*q}, v{t0}, v{cv+i}")
            A(f"v_fmac_f32 v{acc+2*q+1}, v{t1}, v{cv+i}")
    stamp(A, 3)
    for sh in (4, 8):
        for e in range(8):
            A(f"v_add_f32_dpp v{acc+e}, v{acc+e}, v{acc+e} row_ror:{sh} row_mask:0xf bank_mask:0xf")
    A(f"v_lshrrev_b32 v{t0}, 4, v0")
    A(f"v_lshlrev_b32 v{t0}, 7, v{t0}")
    A(f"v_lshl_add_u32 v{t0}, v{cg}, 5, v{t0}")
    A(f"ds_write_b128 v{t0}, {V(acc,4)}")
    A(f"ds_write_b128 v{t0}, {V(acc+4,4)} offset:16")
    A("s_waitcnt lgkmcnt(0)")
    A("s_barrier")
    A("s_cmp_lg_u32 s48, 0")
    A("s_cbranch_scc1 K1_END")
    A(f"v_and_b32 v{t1}, 31, v{lane}")
    A(f"v_lshlrev_b32 v{t0}, 2, v{t1}")
    for pz in range(16):
        A(f"ds_read_b32 v{w+pz}, v{t0} offset:{128*pz}")
    A("s_waitcnt lgkmcnt(0)")
    for pz in range(1, 16):
        A(f"v_add_f32 v{w}, v{w}, v{w+pz}")
    A(f"v_cvt_pk_bf16_f32 v{w}, v{w}, v{w}")
    A(f"v_lshlrev_b32 v{w}, 16, v{w}")
    A("s_mul_i32 s53, s50, 57")
    A("s_lshr_b32 s53, s53, 10")
    A("s_mov_b32 s54, 0")
    A("s_cmp_eq_u32 s53, 1")
    A("s_cselect_b32 s54, 1.0, s54")
    A("s_cmp_eq_u32 s53, 4")
    A("s_cselect_b32 s54, 1.0, s54")
    A(f"v_add_f32 v{w}, s54, v{w}")
    A(f"v_cvt_pk_bf16_f32 v{w+1}, v{w}, v{w}")
    A(f"v_lshlrev_b32 v{w}, 16, v{w+1}")
    A("s_lshl_b32 s55, s50, 7")
    A("s_lshl_b32 s56, s50, 6")
    A(f"s_add_u32 s56, s56, {WS_MODB}")
    A(f"v_lshlrev_b32 v{t1}, 1, v{t1}")
    A(f"buffer_store_dword v{w}, v{t0}, {S(SWS,4)}, s55 offen")
    A(f"buffer_store_short v{w+1}, v{t1}, {S(SWS,4)}, s56 offen")
    stamp_flush(A, 0, SWS, 48, w+4)
    A("s_endpgm")
    v.release(m0)
    A.label("K1_LN")
    A("s_sub_u32 s49, s2, 112")
    A("s_lshl_b32 s49, s49, 2")
    A("s_add_u32 s49, s49, s48")
    A("s_lshl_b32 s49, s49, 3")
    gen_ln_rows(A, v, SX, SWS, 49, WS_XH, None, lane)
    A("s_add_u32 s48, s48, 4")
    stamp_flush(A, 0, SWS, 48, 12)
    A("s_endpgm")
    A.label("K1_PACK")
    A("s_sub_u32 s49, s2, 176")
    A("s_lshl_b32 s49, s49, 2")
    A("s_add_u32 s49, s49, s48")
    A("s_mul_i32 s50, s49, 171")
    A("s_lshr_b32 s50, s50, 10")
    A("s_mul_i32 s51, s50, 6")
    A("s_sub_u32 s51, s49, s51")
    A("s_mul_i32 s51, s51, 6")
    m = v.get(); h = v.get(); voff = v.get(); t0 = v.get(); t1 = v.get(); vo = v.get()
    e = v.get(48, 4); o = v.get(24, 4)
    A(f"v_and_b32 v{m}, 31, v{lane}")
    A(f"v_lshrrev_b32 v{h}, 5, v{lane}")
    A("s_mul_i32 s52, s49, 6144")
    A(f"s_add_u32 s52, s52, {WS_WQKV}")
    A(f"v_lshlrev_b32 v{vo}, 4, v{lane}")
    A("s_cmp_ge_u32 s50, 20")
    A("s_cbranch_scc1 K1_PACK_KV")
    A("s_lshl_b32 s53, s50, 5")
    A(f"v_add_u32 v{t0}, s53, v{m}")
    A(f"v_mul_u32_u24 v{t1}, 3277, v{t0}")
    A(f"v_lshrrev_b32 v{t1}, 16, v{t1}")
    A(f"v_mul_u32_u24 v{voff}, 20, v{t1}")
    A(f"v_sub_u32 v{t0}, v{t0}, v{voff}")
    A(f"v_mul_u32_u24 v{voff}, 18, v{t1}")
    A(f"v_add_u32 v{voff}, v{voff}, v{t0}")
    A(f"v_lshlrev_b32 v{voff}, 1, v{voff}")
    A(f"v_mul_u32_u24 v{t1}, {8*1152}, v{h}")
    A(f"v_add_u32 v{voff}, v{voff}, v{t1}")
    A(f"v_mov_b32 v{t1}, {OOB}")
    A(f"v_cmp_gt_u32 vcc, 18, v{t0}")
    A(f"v_cndmask_b32 v{voff}, v{t1}, v{voff}, vcc")
    def packloads(srd, stride):
        A(f"s_mul_i32 s54, s51, {16*stride}")
        for f in range(6):
            for j in range(8):
                A(f"buffer_load_ushort v{e+8*f+j}, v{voff}, {S(srd,4)}, s54 offen")
                A(f"s_add_u32 s54, s54, {stride if j < 7 else 9*stride}")
    packloads(SWQ, 1152)
    A("s_branch K1_PACK_ST")
    A.label("K1_PACK_KV")
    A(f"v_lshlrev_b32 v{voff}, 1, v{m}")
    A(f"v_mul_u32_u24 v{t1}, {8*36}, v{h}")
    A(f"v_add_u32 v{voff}, v{voff}, v{t1}")
    A(f"v_mov_b32 v{t1}, {OOB}")
    A(f"v_cmp_gt_u32 vcc, 18, v{m}")
    A(f"v_cndmask_b32 v{voff}, v{t1}, v{voff}, vcc")
    A("s_cmp_eq_u32 s50, 21")
    A("s_cbranch_scc1 K1_PACK_V")
    packloads(SWK, 36)
    A("s_branch K1_PACK_ST")
    A.label("K1_PACK_V")
    packloads(SWV, 36)
    A.label("K1_PACK_ST")
    for f in range(6):
        A(f"s_waitcnt vmcnt({40-8*f + f})")
        for q in range(4):
            A(f"v_lshl_or_b32 v{o+4*f+q}, v{e+8*f+2*q+1}, 16, v{e+8*f+2*q}")
        A(f"buffer_store_dwordx4 {V(o+4*f,4)}, v{vo}, {S(SWS,4)}, s52 offen offset:{1024*f if f < 4 else 0}" if f < 4 else
          f"buffer_store_dwordx4 {V(o+4*f,4)}, v{vo}, {S(SWS,4)}, s52 offen offset:{1024*(f-4)}")
        if f == 3: A("s_add_u32 s52, s52, 4096")
    A("s_add_u32 s48, s48, 8")
    stamp_flush(A, 0, SWS, 48, e)
    A("s_endpgm")
    A.label("K1_PF")
    code_prefetch(A, None, 0, 2, 4, 256, TEXT_BYTES)
    A("s_waitcnt vmcnt(0)")
    A.label("K1_END")
    A("s_endpgm")
    return name, A.finish(), kernel_desc(name, v.hi, 64), f"; @launch kernel={name} grid=({NWG1},1,1) block=(256,1,1) lds=2048"
```

```python
from asmlib import *

S_, D_, H_, DH, F_ = 2048, 576, 32, 18, 4608
KA = dict(x=0, wq=8, wk=16, wv=24, wo=32, bx=40, wg=48, wu=56, wd=64, c=72, wmod=80, out=88, dbg=96, ws=104)
SZ = dict(x=2048*576*2, wq=576*576*2, wk=576*18*2, wv=576*18*2, wo=576*576*2, wg=576*4608*2, wu=576*4608*2,
          wd=4608*576*2, c=576*2, wmod=576*3456*2, out=2048*576*2, dbg=256, ws=0x10000000)
WS_MODT = 0x0
WS_MODB = 0x8000
WS_XH   = 0x100000
WS_WQKV = 0x400000
WS_QF   = 0x500000
WS_KV   = 0x800000
WS_OF   = 0x900000
WS_WOP  = 0xC00000
WS_X1F  = 0xD00000
WS_X1P  = 0x1000000
WS_STAT = 0x1300000
WS_UW   = 0x1380000
WS_W1P  = 0x1400000
WS_W2P  = 0x2000000
WS_HF   = 0x2800000
WS_PART = 0x4000000
KVB = 2432
OOB = 0x40000000

def load_ptrs(A, names, sbase):
    r = {}
    for i, n in enumerate(names):
        A(f"s_load_dwordx2 s[{sbase+2*i}:{sbase+2*i+1}], s[0:1], {KA[n]}")
        r[n] = sbase + 2 * i
    return r

def make_srd(A, srd, ptr, nbytes, off=0):
    if off:
        A(f"s_add_u32 s{srd}, s{ptr}, {off}")
        A(f"s_addc_u32 s{srd+1}, s{ptr+1}, 0")
    else:
        A(f"s_mov_b32 s{srd}, s{ptr}")
        A(f"s_mov_b32 s{srd+1}, s{ptr+1}")
    A(f"s_mov_b32 s{srd+2}, {nbytes}")
    A(f"s_mov_b32 s{srd+3}, 0x00020000")

import struct
def f32bits(x):
    return "0x%08x" % struct.unpack("<I", struct.pack("<f", x))[0]

def magic_div(d, nmax):
    for sh in range(1, 32):
        mul = (1 << sh) // d + 1
        if mul * nmax >= (1 << 32): break
        if all((n * mul) >> sh == n // d for n in range(nmax + 1)):
            return mul, sh
    raise ValueError("no magic")

def s_divmod(A, sq, sr, sn, d, nmax):
    mul, sh = magic_div(d, nmax)
    A(f"s_mul_i32 s{sq}, s{sn}, {mul}")
    A(f"s_lshr_b32 s{sq}, s{sq}, {sh}")
    if sr is not None:
        A(f"s_mul_i32 s{sr}, s{sq}, {d}")
        A(f"s_sub_u32 s{sr}, s{sn}, s{sr}")

class VM:
    def __init__(self, A): self.A = A; self.ops = []
    def issue(self, text, tag=None):
        self.A(text); self.ops.append(tag)
    def count_after(self, tag):
        idx = max(i for i, t in enumerate(self.ops) if t == tag)
        return len(self.ops) - 1 - idx
    def wait(self, tag, extra=""):
        n = self.count_after(tag)
        assert n <= 63, n
        self.A(f"s_waitcnt vmcnt({n}){extra}")

import os
DIAG = os.environ.get("DIAG", "") != ""
WS_DBG = 0x8000000
STAMP_S = 84
def stamp(A, i, cyc=False):
    if not DIAG: return
    A(f"{'s_memtime' if cyc else 's_memrealtime'} s[{STAMP_S+2*i}:{STAMP_S+2*i+1}]")
    A("s_waitcnt lgkmcnt(0)")
def stamp_init(A):
    if not DIAG: return
    for i in range(16): A(f"s_mov_b32 s{STAMP_S+i}, 0")
def stamp_flush(A, kid, srd_ws, swave, vtmp):
    if not DIAG: return
    A("s_waitcnt vmcnt(0) lgkmcnt(0)")
    A(f"s_memrealtime s[{STAMP_S+14}:{STAMP_S+15}]")
    A("s_waitcnt lgkmcnt(0)")
    for i in range(8): A(f"v_mov_b32 v{vtmp+i}, s{STAMP_S+2*i}")
    A(f"s_add_u32 s100, s2, {kid*448}")
    A("s_lshl_b32 s100, s100, 4")
    A(f"s_add_u32 s100, s100, s{swave}")
    A("s_lshl_b32 s100, s100, 5")
    A(f"s_add_u32 s100, s100, {WS_DBG}")
    A(f"v_mov_b32 v{vtmp+8}, 0")
    A(f"buffer_store_dwordx4 {V(vtmp,4)}, v{vtmp+8}, {S(srd_ws,4)}, s100 offen")
    A(f"buffer_store_dwordx4 {V(vtmp+4,4)}, v{vtmp+8}, {S(srd_ws,4)}, s100 offen offset:16")

def pair_tiles(kk):
    c, r = divmod(kk, 9)
    if r < 8:
        t0 = 18 * c + 9 * (r >> 2) + 2 * (r & 3)
        return t0, t0 + 1
    return 18 * c + 8, 18 * c + 17

def kperm(nkk):
    out = []
    for kk in range(nkk):
        T = pair_tiles(kk)
        for g in range(4):
            for j in range(8):
                out.append(16 * T[j >> 2] + 4 * g + (j & 3))
    return out

class Cnt:
    def __init__(self, maxv): self.ops = []; self.maxv = maxv; self.done = 0
    def issue(self, tag): self.ops.append(tag)
    def need(self, tag):
        idx = max(i for i, t in enumerate(self.ops) if t == tag)
        if idx < self.done: return None
        n = len(self.ops) - 1 - idx
        n = min(n, self.maxv)
        self.done = len(self.ops) - n
        return n

class Sync:
    def __init__(self, A): self.A = A; self.vm = Cnt(63); self.lg = Cnt(15)
    def vmem(self, text, tag=None):
        self.A(text); self.vm.issue(tag)
        assert len(self.vm.ops) - self.vm.done <= 63, "too many vmem ops in flight"
    def lds(self, text, tag=None):
        self.A(text); self.lg.issue(tag)
    def wait(self, vm=None, lg=None):
        parts = []
        if vm is not None:
            n = self.vm.need(vm)
            if n is not None: parts.append(f"vmcnt({n})")
        if lg is not None:
            n = self.lg.need(lg)
            if n is not None: parts.append(f"lgkmcnt({n})")
        if parts: self.A("s_waitcnt " + " ".join(parts))
    def drain(self):
        self.A("s_waitcnt vmcnt(0) lgkmcnt(0)")
        self.vm.done = len(self.vm.ops); self.lg.done = len(self.lg.ops)

def code_prefetch(A, label, vtid, vtmp, stmp, nthreads, nbytes):
    if os.environ.get("NOPF", ""): return
    A(f"s_getpc_b64 s[{stmp}:{stmp+1}]")
    A.label(label)
    A(f"s_mov_b32 s{stmp+2}, TEXT_END-{label}")
    A(f"s_mov_b32 s{stmp+3}, 0x00020000")
    A(f"v_lshlrev_b32 v{vtmp}, 4, v{vtid}")
    per = nthreads * 16
    n = (nbytes + per - 1) // per
    for i in range(n):
        A(f"buffer_load_dwordx4 {V(vtmp+2,4)}, v{vtmp}, s[{stmp}:{stmp+3}], 0 offen")
        if i < n - 1: A(f"v_add_u32 v{vtmp}, {per}, v{vtmp}")
    return n
```

```python
from common import *

N_MOD, N_LN, N_PACK, N_PF = 112, 128, 198, 8
NWG1 = N_MOD + N_LN + N_PACK + N_PF
TEXT_BYTES = 64 * 1024

def gen_k1():
    A = Asm()
    v = Alloc("v", 1, 128)
    name = "k1_prep_kernel"
    A(f"s_cmp_ge_u32 s2, {NWG1}")
    A("s_cbranch_scc1 K1_END")
    A(f"s_cmp_ge_u32 s2, {NWG1 - N_PF}")
    A("s_cbranch_scc1 K1_PF")
    stamp_init(A); stamp(A, 0)
    A("s_load_dwordx8 s[4:11], s[0:1], 0")
    A("s_load_dwordx4 s[12:15], s[0:1], 72")
    A("s_load_dwordx2 s[16:17], s[0:1], 104")
    p = dict(x=4, wq=6, wk=8, wv=10, c=12, wmod=14, ws=16)
    SA, SB, SWS = 20, 24, 44
    lane = v.get(); wv = v.get()
    A(f"v_and_b32 v{lane}, 63, v0")
    A(f"v_lshrrev_b32 v{wv}, 6, v0")
    A(f"v_readfirstlane_b32 s48, v{wv}")
    A(f"s_cmp_ge_u32 s2, {N_MOD + N_LN}")
    A("s_cbranch_scc1 K1_PACK")
    A(f"s_cmp_ge_u32 s2, {N_MOD}")
    A("s_cbranch_scc1 K1_LN")
    m0 = v.mark()
    A("s_and_b32 s49, s2, 7")
    A("s_lshr_b32 s50, s2, 3")
    A("s_and_b32 s51, s50, 1")
    A("s_lshr_b32 s50, s50, 1")
    A("s_lshl_b32 s50, s50, 3")
    A("s_add_u32 s50, s50, s49")
    A("s_cmp_ge_u32 s50, 54")
    A("s_cbranch_scc1 K1_END")
    A("s_lshl_b32 s50, s50, 1")
    A("s_add_u32 s50, s50, s51")
    cg = v.get(); rg = v.get(); voff = v.get(); vco = v.get(); t0 = v.get(2, 2); t1 = t0 + 1
    w = v.get(36, 4); cv = v.get(10, 2); acc = v.get(8, 4)
    A(f"v_and_b32 v{cg}, 3, v0")
    A(f"v_lshrrev_b32 v{rg}, 2, v0")
    A(f"v_mul_u32_u24 v{voff}, 6912, v{rg}")
    A(f"v_lshl_add_u32 v{voff}, v{cg}, 4, v{voff}")
    A("s_lshl_b32 s52, s50, 6")
    A(f"v_lshlrev_b32 v{vco}, 1, v{rg}")
    A("s_waitcnt lgkmcnt(0)")
    make_srd(A, SA, p["wmod"], SZ["wmod"]); make_srd(A, SB, p["c"], SZ["c"])
    for i in range(9):
        A(f"buffer_load_ushort v{cv+i}, v{vco}, {S(SB,4)}, 0 offen offset:{128*i}")
    for i in range(9):
        A(f"buffer_load_dwordx4 {V(w+4*i,4)}, v{voff}, {S(SA,4)}, s52 offen")
        if i < 8: A(f"s_add_u32 s52, s52, {64*6912}")
    make_srd(A, SWS, p["ws"], SZ["ws"])
    stamp(A, 1)
    for e in range(8):
        A(f"v_mov_b32 v{acc+e}, 0")
    A("s_waitcnt vmcnt(9)")
    for i in range(9):
        A(f"v_lshlrev_b32 v{cv+i}, 16, v{cv+i}")
        A(f"v_mul_f32 v{t0}, {f32bits(-1.4426950408889634)}, v{cv+i}")
        A(f"v_exp_f32 v{t0}, v{t0}")
        A(f"v_add_f32 v{t0}, 1.0, v{t0}")
        A(f"v_rcp_f32 v{t0}, v{t0}")
        A(f"v_mul_f32 v{t0}, v{t0}, v{cv+i}")
        A(f"v_cvt_pk_bf16_f32 v{t0}, v{t0}, v{t0}")
        A(f"v_lshlrev_b32 v{cv+i}, 16, v{t0}")
    for i in range(9):
        A(f"s_waitcnt vmcnt({8-i})")
        if i == 0: stamp(A, 2)
        ce = cv + i - (i & 1)
        sel = i & 1
        for q in range(4):
            A(f"v_lshlrev_b32 v{t0}, 16, v{w+4*i+q}")
            A(f"v_and_b32 v{t1}, 0xffff0000, v{w+4*i+q}")
            A(f"v_pk_fma_f32 {V(acc+2*q,2)}, {V(t0,2)}, {V(ce,2)}, {V(acc+2*q,2)} op_sel:[0,{sel},0] op_sel_hi:[1,{sel},1]")
    stamp(A, 3)
    for sh in (4, 8):
        for e in range(8):
            A(f"v_add_f32_dpp v{acc+e}, v{acc+e}, v{acc+e} row_ror:{sh} row_mask:0xf bank_mask:0xf")
    A(f"v_lshrrev_b32 v{t0}, 4, v0")
    A(f"v_lshlrev_b32 v{t0}, 7, v{t0}")
    A(f"v_lshl_add_u32 v{t0}, v{cg}, 5, v{t0}")
    A(f"ds_write_b128 v{t0}, {V(acc,4)}")
    A(f"ds_write_b128 v{t0}, {V(acc+4,4)} offset:16")
    A("s_waitcnt lgkmcnt(0)")
    A("s_barrier")
    A("s_cmp_lg_u32 s48, 0")
    A("s_cbranch_scc1 K1_END")
    A(f"v_and_b32 v{t1}, 31, v{lane}")
    A(f"v_lshlrev_b32 v{t0}, 2, v{t1}")
    A(f"v_lshrrev_b32 v{rg}, 5, v{lane}")
    A(f"v_lshl_add_u32 v{rg}, v{rg}, 10, v{t0}")
    for pz in range(8):
        A(f"ds_read_b32 v{w+pz}, v{rg} offset:{128*pz}")
    A("s_mul_i32 s53, s50, 57")
    A("s_lshr_b32 s53, s53, 10")
    A("s_mov_b32 s54, 0")
    A("s_cmp_eq_u32 s53, 1")
    A("s_cselect_b32 s54, 1.0, s54")
    A("s_cmp_eq_u32 s53, 4")
    A("s_cselect_b32 s54, 1.0, s54")
    A("s_lshl_b32 s55, s50, 7")
    A("s_lshl_b32 s56, s50, 6")
    A(f"s_add_u32 s56, s56, {WS_MODB}")
    A(f"v_lshlrev_b32 v{t1}, 1, v{t1}")
    A("s_waitcnt lgkmcnt(0)")
    for pz in range(1, 8):
        A(f"v_add_f32 v{w}, v{w}, v{w+pz}")
    A(f"v_mov_b32 v{w+1}, v{w}")
    A(f"v_permlane32_swap_b32 v{w}, v{w+1}")
    A(f"v_add_f32 v{w}, v{w}, v{w+1}")
    A(f"v_cvt_pk_bf16_f32 v{w}, v{w}, v{w}")
    A(f"v_lshlrev_b32 v{w}, 16, v{w}")
    A(f"v_add_f32 v{w}, s54, v{w}")
    A(f"v_cvt_pk_bf16_f32 v{w+1}, v{w}, v{w}")
    A(f"v_lshlrev_b32 v{w}, 16, v{w+1}")
    A(f"buffer_store_dword v{w}, v{t0}, {S(SWS,4)}, s55 offen")
    A(f"buffer_store_short v{w+1}, v{t1}, {S(SWS,4)}, s56 offen")
    stamp_flush(A, 0, SWS, 48, w+4)
    A("s_endpgm")
    v.release(m0)
    A.label("K1_LN")
    A(f"s_sub_u32 s49, s2, {N_MOD}")
    A("s_lshl_b32 s49, s49, 2")
    A("s_add_u32 s49, s49, s48")
    A("s_lshl_b32 s49, s49, 2")
    vr = v.get(); vsub = v.get(); voff = v.get(); vo = v.get(); t0 = v.get(2, 2); t1 = t0 + 1
    raw = v.get(18, 2); x = v.get(36, 2); sm = v.get(2, 2); sq = v.get(2, 2)
    A(f"v_lshrrev_b32 v{vr}, 4, v{lane}")
    A(f"v_and_b32 v{vsub}, 15, v{lane}")
    A(f"v_add_u32 v{vr}, s49, v{vr}")
    A(f"v_mul_u32_u24 v{voff}, 1152, v{vr}")
    A(f"v_lshl_add_u32 v{voff}, v{vsub}, 3, v{voff}")
    A("s_waitcnt lgkmcnt(0)")
    make_srd(A, SA, p["x"], SZ["x"])
    for i in range(9):
        A(f"buffer_load_dwordx2 {V(raw+2*i,2)}, v{voff}, {S(SA,4)}, 0 offen offset:{128*i}")
    make_srd(A, SWS, p["ws"], SZ["ws"])
    A(f"v_lshrrev_b32 v{t0}, 5, v{vr}")
    A(f"v_mul_u32_u24 v{vo}, {36*1024}, v{t0}")
    A(f"v_and_b32 v{t0}, 31, v{vr}")
    A(f"v_lshl_add_u32 v{vo}, v{t0}, 4, v{vo}")
    A(f"v_lshrrev_b32 v{t0}, 1, v{vsub}")
    A(f"v_lshl_add_u32 v{vo}, v{t0}, 9, v{vo}")
    A(f"v_and_b32 v{t0}, 1, v{vsub}")
    A(f"v_lshl_add_u32 v{vo}, v{t0}, 3, v{vo}")
    A(f"s_mov_b32 s50, {WS_XH}")
    stamp(A, 1)
    for i in range(9):
        A(f"s_waitcnt vmcnt({8-i})")
        for q in range(2):
            A(f"v_lshlrev_b32 v{x+4*i+2*q}, 16, v{raw+2*i+q}")
            A(f"v_and_b32 v{x+4*i+2*q+1}, 0xffff0000, v{raw+2*i+q}")
        if i == 0:
            A(f"v_pk_add_f32 {V(sm,2)}, {V(x,2)}, {V(x+2,2)}")
        else:
            A(f"v_pk_add_f32 {V(sm,2)}, {V(sm,2)}, {V(x+4*i,2)}")
            A(f"v_pk_add_f32 {V(sm,2)}, {V(sm,2)}, {V(x+4*i+2,2)}")
    stamp(A, 2)
    def red16(r):
        A(f"v_add_f32 v{r}, v{r}, v{r+1}")
        A(f"v_add_f32_dpp v{r}, v{r}, v{r} quad_perm:[1,0,3,2] row_mask:0xf bank_mask:0xf")
        A(f"v_add_f32_dpp v{r}, v{r}, v{r} quad_perm:[2,3,0,1] row_mask:0xf bank_mask:0xf")
        A(f"v_add_f32_dpp v{r}, v{r}, v{r} row_half_mirror row_mask:0xf bank_mask:0xf")
        A(f"v_add_f32_dpp v{r}, v{r}, v{r} row_mirror row_mask:0xf bank_mask:0xf")
        A(f"v_mul_f32 v{r}, {f32bits(1.0/576)}, v{r}")
    red16(sm)
    for e in range(0, 36, 2):
        A(f"v_pk_add_f32 {V(t0,2)}, {V(x+e,2)}, {V(sm,2)} op_sel_hi:[1,0] neg_lo:[0,1] neg_hi:[0,1]")
        if e == 0: A(f"v_pk_mul_f32 {V(sq,2)}, {V(t0,2)}, {V(t0,2)}")
        else: A(f"v_pk_fma_f32 {V(sq,2)}, {V(t0,2)}, {V(t0,2)}, {V(sq,2)}")
    red16(sq)
    A(f"v_cvt_pk_bf16_f32 v{t0}, v{sm}, v{sq}")
    A(f"v_lshlrev_b32 v{sm}, 16, v{t0}")
    A(f"v_and_b32 v{sq}, 0xffff0000, v{t0}")
    A(f"v_add_f32 v{sq}, {f32bits(1e-5)}, v{sq}")
    A(f"v_cvt_pk_bf16_f32 v{t0}, v{sq}, v{sq}")
    A(f"v_lshlrev_b32 v{sq}, 16, v{t0}")
    A(f"v_sqrt_f32 v{sq}, v{sq}")
    A(f"v_cvt_pk_bf16_f32 v{t0}, v{sq}, v{sq}")
    A(f"v_lshlrev_b32 v{sq}, 16, v{t0}")
    A(f"v_rcp_f32 v{sq}, v{sq}")
    for i in range(9):
        for q in range(2):
            a = x + 4 * i + 2 * q
            A(f"v_pk_add_f32 {V(a,2)}, {V(a,2)}, {V(sm,2)} op_sel_hi:[1,0] neg_lo:[0,1] neg_hi:[0,1]")
            A(f"v_pk_mul_f32 {V(a,2)}, {V(a,2)}, {V(sq,2)} op_sel_hi:[1,0]")
            A(f"v_cvt_pk_bf16_f32 v{raw+2*i+q}, v{a}, v{a+1}")
        A(f"buffer_store_dwordx2 {V(raw+2*i,2)}, v{vo}, {S(SWS,4)}, s50 offen")
        if i < 8: A("s_add_u32 s50, s50, 4096")
    A("s_add_u32 s48, s48, 4")
    stamp_flush(A, 0, SWS, 48, x)
    A("s_endpgm")
    v.release(m0)
    A.label("K1_PACK")
    A(f"s_sub_u32 s49, s2, {N_MOD + N_LN}")
    A("s_lshl_b32 s49, s49, 2")
    A("s_add_u32 s49, s49, s48")
    s_divmod(A, 50, 51, 49, 36, 800)
    m = v.get(); h = v.get(); voff = v.get(); t0 = v.get(); t1 = v.get(); vo = v.get()
    e = v.get(24, 4); o = v.get(12, 4)
    A(f"v_and_b32 v{m}, 31, v{lane}")
    A(f"v_lshrrev_b32 v{h}, 5, v{lane}")
    A("s_lshl_b32 s52, s49, 10")
    A(f"s_add_u32 s52, s52, {WS_WQKV}")
    A(f"v_lshlrev_b32 v{vo}, 4, v{lane}")
    A("s_lshl_b32 s53, s50, 5")
    A(f"v_add_u32 v{t0}, s53, v{m}")
    A(f"v_mul_u32_u24 v{t1}, 3277, v{t0}")
    A(f"v_lshrrev_b32 v{t1}, 16, v{t1}")
    A(f"v_mul_u32_u24 v{voff}, 20, v{t1}")
    A(f"v_sub_u32 v{t0}, v{t0}, v{voff}")
    A(f"v_mul_u32_u24 v{voff}, 18, v{t1}")
    A(f"v_add_u32 v{voff}, v{voff}, v{t0}")
    A("s_cmp_ge_u32 s50, 20")
    A("s_cselect_b64 s[54:55], -1, 0")
    A("s_movk_i32 s56, 1152")
    A("s_cselect_b32 s56, 36, s56")
    A(f"s_mov_b32 s57, {SZ['wq']}")
    A(f"s_cselect_b32 s57, {SZ['wk']}, s57")
    A(f"v_cndmask_b32 v{voff}, v{voff}, v{m}, s[54:55]")
    A(f"v_cndmask_b32 v{t0}, v{t0}, v{m}, s[54:55]")
    A(f"v_lshlrev_b32 v{voff}, 1, v{voff}")
    A("s_lshl_b32 s58, s56, 3")
    A(f"v_mul_lo_u32 v{t1}, v{h}, s58")
    A(f"v_add_u32 v{voff}, v{voff}, v{t1}")
    A(f"v_mov_b32 v{t1}, {OOB}")
    A(f"v_cmp_gt_u32 vcc, 18, v{t0}")
    A(f"v_cndmask_b32 v{voff}, v{t1}, v{voff}, vcc")
    A("s_mul_i32 s59, s51, s56")
    A("s_lshl_b32 s59, s59, 4")
    A("s_mul_i32 s60, s56, 9")
    A("s_waitcnt lgkmcnt(0)")
    A(f"s_mov_b32 s{SA}, s6")
    A(f"s_mov_b32 s{SA+1}, s7")
    A("s_cmp_eq_u32 s50, 20")
    A(f"s_cselect_b32 s{SA}, s8, s{SA}")
    A(f"s_cselect_b32 s{SA+1}, s9, s{SA+1}")
    A("s_cmp_eq_u32 s50, 21")
    A(f"s_cselect_b32 s{SA}, s10, s{SA}")
    A(f"s_cselect_b32 s{SA+1}, s11, s{SA+1}")
    A(f"s_mov_b32 s{SA+2}, s57")
    A(f"s_mov_b32 s{SA+3}, 0x00020000")
    for f in range(1):
        for j in range(8):
            A(f"buffer_load_ushort v{e+8*f+j}, v{voff}, {S(SA,4)}, s59 offen")
            A(f"s_add_u32 s59, s59, s{56 if j < 7 else 60}")
    make_srd(A, SWS, p["ws"], SZ["ws"])
    for f in range(1):
        A(f"s_waitcnt vmcnt(0)")
        for q in range(4):
            A(f"v_lshl_or_b32 v{o+4*f+q}, v{e+8*f+2*q+1}, 16, v{e+8*f+2*q}")
        A(f"buffer_store_dwordx4 {V(o+4*f,4)}, v{vo}, {S(SWS,4)}, s52 offen offset:{1024*f}")
    A("s_add_u32 s48, s48, 8")
    stamp_flush(A, 0, SWS, 48, e)
    A("s_endpgm")
    A.label("K1_PF")
    code_prefetch(A, "K1_PF2", 0, 2, 4, 256, TEXT_BYTES)
    A("s_waitcnt vmcnt(0)")
    A.label("K1_END")
    A("s_endpgm")
    return name, A.finish(), kernel_desc(name, v.hi, 64), f"; @launch kernel={name} grid=({NWG1},1,1) block=(256,1,1) lds=2048"
```

```python
from asmlib import *

S_, D_, H_, DH, F_ = 2048, 576, 32, 18, 4608
KA = dict(x=0, wq=8, wk=16, wv=24, wo=32, bx=40, wg=48, wu=56, wd=64, c=72, wmod=80, out=88, dbg=96, ws=104)
SZ = dict(x=2048*576*2, wq=576*576*2, wk=576*18*2, wv=576*18*2, wo=576*576*2, wg=576*4608*2, wu=576*4608*2,
          wd=4608*576*2, c=576*2, wmod=576*3456*2, out=2048*576*2, dbg=256, ws=0x10000000)
WS_MODT = 0x0
WS_MODB = 0x8000
WS_XH   = 0x100000
WS_WQKV = 0x400000
WS_QF   = 0x500000
WS_KV   = 0x800000
WS_OF   = 0x900000
WS_WOP  = 0xC00000
WS_X1F  = 0xD00000
WS_X1P  = 0x1000000
WS_STAT = 0x1300000
WS_UW   = 0x1380000
WS_W1P  = 0x1400000
WS_W2P  = 0x2000000
WS_HF   = 0x2800000
WS_PART = int(__import__("os").environ.get("PARTOFF", "0x4000000"), 16)
WS_FLAG = 0x13C0000
KVB = 2432
OOB = 0x40000000

def load_ptrs(A, names, sbase):
    r = {}
    for i, n in enumerate(names):
        A(f"s_load_dwordx2 s[{sbase+2*i}:{sbase+2*i+1}], s[0:1], {KA[n]}")
        r[n] = sbase + 2 * i
    return r

def make_srd(A, srd, ptr, nbytes, off=0):
    if off:
        A(f"s_add_u32 s{srd}, s{ptr}, {off}")
        A(f"s_addc_u32 s{srd+1}, s{ptr+1}, 0")
    else:
        A(f"s_mov_b32 s{srd}, s{ptr}")
        A(f"s_mov_b32 s{srd+1}, s{ptr+1}")
    A(f"s_mov_b32 s{srd+2}, {nbytes}")
    A(f"s_mov_b32 s{srd+3}, 0x00020000")

import struct
def f32bits(x):
    return "0x%08x" % struct.unpack("<I", struct.pack("<f", x))[0]

def magic_div(d, nmax):
    for sh in range(1, 32):
        mul = (1 << sh) // d + 1
        if mul * nmax >= (1 << 32): break
        if all((n * mul) >> sh == n // d for n in range(nmax + 1)):
            return mul, sh
    raise ValueError("no magic")

def s_divmod(A, sq, sr, sn, d, nmax):
    mul, sh = magic_div(d, nmax)
    A(f"s_mul_i32 s{sq}, s{sn}, {mul}")
    A(f"s_lshr_b32 s{sq}, s{sq}, {sh}")
    if sr is not None:
        A(f"s_mul_i32 s{sr}, s{sq}, {d}")
        A(f"s_sub_u32 s{sr}, s{sn}, s{sr}")

class VM:
    def __init__(self, A): self.A = A; self.ops = []
    def issue(self, text, tag=None):
        self.A(text); self.ops.append(tag)
    def count_after(self, tag):
        idx = max(i for i, t in enumerate(self.ops) if t == tag)
        return len(self.ops) - 1 - idx
    def wait(self, tag, extra=""):
        n = self.count_after(tag)
        assert n <= 63, n
        self.A(f"s_waitcnt vmcnt({n}){extra}")

import os
DIAG = os.environ.get("DIAG", "") != ""
WS_DBG = 0x8000000
STAMP_S = 84
def stamp(A, i, cyc=False):
    if not DIAG: return
    A(f"{'s_memtime' if cyc else 's_memrealtime'} s[{STAMP_S+2*i}:{STAMP_S+2*i+1}]")
    A("s_waitcnt lgkmcnt(0)")
def stamp_init(A):
    if not DIAG: return
    for i in range(16): A(f"s_mov_b32 s{STAMP_S+i}, 0")
def stamp_flush(A, kid, srd_ws, swave, vtmp):
    if not DIAG: return
    A("s_waitcnt vmcnt(0) lgkmcnt(0)")
    A(f"s_memrealtime s[{STAMP_S+14}:{STAMP_S+15}]")
    A("s_waitcnt lgkmcnt(0)")
    for i in range(8): A(f"v_mov_b32 v{vtmp+i}, s{STAMP_S+2*i}")
    A(f"s_add_u32 s100, s2, {kid*448}")
    A("s_lshl_b32 s100, s100, 4")
    A(f"s_add_u32 s100, s100, s{swave}")
    A("s_lshl_b32 s100, s100, 5")
    A(f"s_add_u32 s100, s100, {WS_DBG}")
    A(f"v_mov_b32 v{vtmp+8}, 0")
    A(f"buffer_store_dwordx4 {V(vtmp,4)}, v{vtmp+8}, {S(srd_ws,4)}, s100 offen")
    A(f"buffer_store_dwordx4 {V(vtmp+4,4)}, v{vtmp+8}, {S(srd_ws,4)}, s100 offen offset:16")

def pair_tiles(kk):
    c, r = divmod(kk, 9)
    if r < 8:
        t0 = 18 * c + 9 * (r >> 2) + 2 * (r & 3)
        return t0, t0 + 1
    return 18 * c + 8, 18 * c + 17

def kperm(nkk):
    out = []
    for kk in range(nkk):
        T = pair_tiles(kk)
        for g in range(4):
            for j in range(8):
                out.append(16 * T[j >> 2] + 4 * g + (j & 3))
    return out

class Cnt:
    def __init__(self, maxv): self.ops = []; self.maxv = maxv; self.done = 0
    def issue(self, tag): self.ops.append(tag)
    def need(self, tag):
        idx = max(i for i, t in enumerate(self.ops) if t == tag)
        if idx < self.done: return None
        n = len(self.ops) - 1 - idx
        n = min(n, self.maxv)
        self.done = len(self.ops) - n
        return n

class Sync:
    def __init__(self, A): self.A = A; self.vm = Cnt(63); self.lg = Cnt(15)
    def vmem(self, text, tag=None):
        self.A(text); self.vm.issue(tag)
        assert len(self.vm.ops) - self.vm.done <= 63, "too many vmem ops in flight"
    def lds(self, text, tag=None):
        self.A(text); self.lg.issue(tag)
    def wait(self, vm=None, lg=None):
        parts = []
        if vm is not None:
            n = self.vm.need(vm)
            if n is not None: parts.append(f"vmcnt({n})")
        if lg is not None:
            n = self.lg.need(lg)
            if n is not None: parts.append(f"lgkmcnt({n})")
        if parts: self.A("s_waitcnt " + " ".join(parts))
    def drain(self):
        self.A("s_waitcnt vmcnt(0) lgkmcnt(0)")
        self.vm.done = len(self.vm.ops); self.lg.done = len(self.lg.ops)

def code_prefetch(A, label, vtid, vtmp, stmp, nthreads, nbytes):
    if os.environ.get("NOPF", ""): return
    A(f"s_getpc_b64 s[{stmp}:{stmp+1}]")
    A.label(label)
    A(f"s_mov_b32 s{stmp+2}, TEXT_END-{label}")
    A(f"s_mov_b32 s{stmp+3}, 0x00020000")
    A(f"v_lshlrev_b32 v{vtmp}, 4, v{vtid}")
    per = nthreads * 16
    n = (nbytes + per - 1) // per
    for i in range(n):
        A(f"buffer_load_dwordx4 {V(vtmp+2,4)}, v{vtmp}, s[{stmp}:{stmp+3}], 0 offen")
        if i < n - 1: A(f"v_add_u32 v{vtmp}, {per}, v{vtmp}")
    return n

def stats_ops(E, b):
    E(f"v_add_f32 v{b}, v{b}, v{b+2}")
    E(f"v_add_f32 v{b+1}, v{b+1}, v{b+3}")
    for swp in ("v_permlane32_swap_b32", "v_permlane16_swap_b32"):
        for i in range(2): E(f"v_mov_b32 v{b+2+i}, v{b+i}")
        for i in range(2): E(f"{swp} v{b+i}, v{b+2+i}")
        for i in range(2): E(f"v_add_f32 v{b+i}, v{b+i}, v{b+2+i}")
    E(f"v_mul_f32 v{b}, {f32bits(1.0/576)}, v{b}")
    E(f"v_mul_f32 v{b+1}, {f32bits(1.0/576)}, v{b+1}")
    E(f"v_fma_f32 v{b+1}, -v{b}, v{b}, v{b+1}")
    E(f"v_max_f32 v{b+1}, 0, v{b+1}")
    E(f"v_cvt_pk_bf16_f32 v{b+2}, v{b+1}, v{b+1}")
    E(f"v_lshlrev_b32 v{b+1}, 16, v{b+2}")
    E(f"v_add_f32 v{b+1}, {f32bits(1e-5)}, v{b+1}")
    E(f"v_cvt_pk_bf16_f32 v{b+2}, v{b+1}, v{b+1}")
    E(f"v_lshlrev_b32 v{b+1}, 16, v{b+2}")
    E(f"v_sqrt_f32 v{b+1}, v{b+1}")

def self_prefetch(A, tag, nthreads, nbytes, vtmp, stmp=96):
    if os.environ.get("NOSELF", ""): return
    A("s_cmp_ge_u32 s2, 16")
    A(f"s_cbranch_scc1 {tag}_NOPF")
    code_prefetch(A, f"{tag}_PF", 0, vtmp, stmp, nthreads, nbytes)
    A.label(f"{tag}_NOPF")
```
